```python
import torch

def _softmax(x, axis=-1):
    return torch.softmax(x, dim=axis)

def _gelu(x):
    return torch.nn.functional.gelu(x, approximate='tanh')

def _silu(x):
    return torch.nn.functional.silu(x)

def _sigmoid(x):
    return torch.sigmoid(x)

def _layernorm(x, axis=-1, eps=1e-05):
    m = x.mean(dim=axis, keepdim=True)
    v = x.var(dim=axis, keepdim=True, unbiased=False)
    return (x - m) / torch.sqrt(v + eps)

def _scatter_add(tgt, idx, src, axis=0):
    return tgt.clone().index_add_(axis, idx, src)

def _segment_sum(src, seg, n):
    out = torch.zeros((n,) + src.shape[1:], dtype=src.dtype)
    return out.index_add_(0, seg, src)

def _pad(x, pw):
    flat = tuple((v for pair in reversed(pw) for v in pair))
    return torch.nn.functional.pad(x, flat)
kernel_name = 'gated_mix__memory_aug_recurrent_mem_tr__glu_gated_glu__prompt'

def setup_inputs():

    _w = lambda a: (lambda t: t.to(torch.bfloat16) if t.is_floating_point() else t)(torch.as_tensor(a))

    def _A_setup():
        B, S, Dm = (1, 2048, 512)
        H, Dh = (32, 128)
        M, seg = (8, 32)
        seg = min(seg, S)
        S = S // seg * seg
        return {'x': _w((lambda *s: torch.randn(*s, dtype=torch.bfloat16) * 0.05)(B, S, Dm)), 'mem0': _w((lambda *s: torch.randn(*s, dtype=torch.bfloat16) * 0.8)(B, M, Dm)), 'Wq': _w((lambda *s: torch.randn(*s, dtype=torch.bfloat16) * 3.2)(Dm, H, Dh) * Dm ** (-0.5)), 'Wk': _w((lambda *s: torch.randn(*s, dtype=torch.bfloat16) * 3.2)(Dm, H, Dh) * Dm ** (-0.5)), 'Wv': _w((lambda *s: torch.randn(*s, dtype=torch.bfloat16) * 0.8)(Dm, H, Dh) * Dm ** (-0.5)), 'Wo': _w((lambda *s: torch.randn(*s, dtype=torch.bfloat16) * 0.8)(H, Dh, Dm) * (H * Dh) ** (-0.5)), 'seg_len': seg}
    _A_in = _A_setup()

    def _B_setup():
        B, S, D, F = (1, 2048, 512, 1376)
        return {'x': _w((lambda *s: torch.randn(*s, dtype=torch.bfloat16) * 0.05)(B, S, D)), 'w_gate': _w((lambda *s: torch.randn(*s, dtype=torch.bfloat16) * 0.8)(D, F)), 'w_up': _w((lambda *s: torch.randn(*s, dtype=torch.bfloat16) * 0.05)(D, F)), 'w_down': _w((lambda *s: torch.randn(*s, dtype=torch.bfloat16) * 0.05)(F, D))}
    _B_in = _B_setup()
    return {'A_x': _A_in['x'], 'A_mem0': _A_in['mem0'], 'A_Wq': _A_in['Wq'], 'A_Wk': _A_in['Wk'], 'A_Wv': _A_in['Wv'], 'A_Wo': _A_in['Wo'], 'A_seg_len': _A_in['seg_len'], 'B_x': _B_in['x'], 'B_w_gate': _B_in['w_gate'], 'B_w_up': _B_in['w_up'], 'B_w_down': _B_in['w_down'], 'gate_w': _w((lambda *s: torch.randn(*s, dtype=torch.bfloat16) * 0.05)(512) * 16.0)}

def reference(A_x, A_mem0, A_Wq, A_Wk, A_Wv, A_Wo, A_seg_len, B_x, B_w_gate, B_w_up, B_w_down, gate_w):

    def _A_ref(x, mem0, Wq, Wk, Wv, Wo, seg_len):
        B, S, Dm = x.shape
        H, Dh = (Wq.shape[1], Wq.shape[2])
        M = mem0.shape[1]
        scale = Dh ** (-0.5)
        n_seg = S // seg_len
        L = M + seg_len
        idx = torch.arange(L)
        mask = (idx[:, None] < M) | (idx[:, None] >= idx[None, :])
        mem = mem0
        outs = []
        for s in range(n_seg):
            xs = x[:, s * seg_len:(s + 1) * seg_len, :].clone()
            h = torch.concatenate([mem, xs], axis=1)
            q = torch.einsum('btd,dhe->bhte', h, Wq)
            k = torch.einsum('btd,dhe->bhte', h, Wk)
            v = torch.einsum('btd,dhe->bhte', h, Wv)
            scores = torch.einsum('bhqe,bhke->bhqk', q, k) * scale
            scores = torch.where(mask[None, None], scores, -1000000000.0)
            p = _softmax(scores, axis=-1)
            o = torch.einsum('bhqk,bhke->bhqe', p, v)
            o = torch.einsum('bhte,hed->btd', o, Wo)
            mem = o[:, :M, :].clone()
            outs.append(o[:, M:, :])
        return torch.concatenate(outs, axis=1)

    def _B_ref(x, w_gate, w_up, w_down):
        g = torch.einsum('bsd,df->bsf', x, w_gate)
        u = torch.einsum('bsd,df->bsf', x, w_up)
        h = _sigmoid(g) * u
        return torch.einsum('bsf,fd->bsd', h, w_down)
    x = A_x
    g = _sigmoid((x * gate_w).sum(-1, keepdims=True))
    a = _A_ref(x, A_mem0, A_Wq, A_Wk, A_Wv, A_Wo, A_seg_len)
    b = _B_ref(x, B_w_gate, B_w_up, B_w_down)
    return g * a + (1 - g) * b
```

```python
from common import *
import loader, xtile, kv

XB, WD, QX, OX, KXB, VXB, FE, KMB, HX, GX = 0, 32768, 81920, 90112, 98304, 106496, 114688, 147456, 151552, 155648
FROW = 176

sDBG, sXCC, sFlagM = 8, 10, 12
sQW0, sQW1, sQR, sVXR, sOW, sHW0 = 14, 15, 16, 17, 18, 19
sH, sW, sStep, sHW1, sTO, sHE, sFail = 20, 21, 22, 23, 24, 25, 26
sT0, sT1, sOff, sB, sWo, sSeg, sRow, sM0, sI, sArr, sGW, sGR, sFE = range(27, 40)
sKX, sVX, sKVK, sKVV, sWS, sPAw, sSlot = 40, 42, 44, 46, 48, 50, 51
SX, SQ, SO, SD, sGate, sUp, sGWp, sOutP, sMask = 52, 56, 60, 64, 68, 70, 72, 74, 76
SPA, SOUT = 60, 64
sCnt, sOutS, sC, sT2, sKFl = 92, 93, 94, 95, 11

vL16, vXA, vXB, vXD, vXT, vWD, vKMW, vRD, vOUT, vTmp = 1, 2, 6, 10, 11, 13, 14, 15, 16, 17
QF, VF, X0, X1, MM = 20, 36, 52, 56, 60
ACC = 64
XF, AQ, AF_, AE = 64, 112, 128, 136
WF, HF32, HF16, OMG, GOWN = 128, 144, 152, 156, 158
KF = 160
FW = 192
def acc(T, t): return ACC + (2*T + t)*4
def wq(T, ks): b = (16*T + ks)*4; return f"a[{b}:{b+3}]"
def wo(T, ks): b = 128 + (4*T + ks)*4; return f"a[{b}:{b+3}]"
def mfma(d, a, b, first): return f"v_mfma_f32_16x16x32_bf16 {r(d,4)}, {a}, {b}, {'0' if first else r(d,4)}"
def mfma16(d, a, b, first=False): return f"v_mfma_f32_16x16x16_bf16 {r(d,4)}, {a}, {b}, {'0' if first else r(d,4)}"
def pack(d, a): return [f"v_cvt_pk_bf16_f32 v{d}, v{a}, v{a+1}", f"v_cvt_pk_bf16_f32 v{d+1}, v{a+2}, v{a+3}"]


def poll(A, tag, sAddr, base, sTarget, cmp, timeout, fail, sleep=2):
    A(f"""
s_mov_b32 s{sTO}, 0
s_branch L_{tag}_e
L_{tag}:
s_sleep {sleep}
L_{tag}_e:
v_mov_b32 v{vTmp}, s{sAddr}
global_load_dword v{vTmp}, v{vTmp}, {sp(base)} sc1
s_add_u32 s{sTO}, s{sTO}, 1
s_cmp_gt_u32 s{sTO}, {timeout}
s_cbranch_scc1 {fail}
s_waitcnt vmcnt(0)
v_readfirstlane_b32 s{sT0}, v{vTmp}
s_cmp_{cmp}_u32 s{sT0}, s{sTarget}
s_cbranch_scc0 L_{tag}
""")


def setup(A, cfg):
    NKV = cfg.get('nkv', 3); NAF = 7 - NKV
    A(f'''
s_load_dwordx2 s[{SX}:{SX+1}], s[0:1], {K_X}
s_load_dwordx2 s[{SQ}:{SQ+1}], s[0:1], {K_WQ}
s_load_dwordx2 s[{SO}:{SO+1}], s[0:1], {K_WO}
s_load_dwordx2 s[{SD}:{SD+1}], s[0:1], {K_WD}
s_load_dwordx4 {sq(sGate)}, s[0:1], {K_WG}
s_load_dwordx4 {sq(sGWp)}, s[0:1], {K_GW}
v_lshlrev_b32 v{vL16}, 4, v0
s_sub_u32 s{sI}, s{sXCC}, {NKV + 1}
s_and_b32 s{sT0}, s{sW}, 1             ; t
s_lshr_b32 s{sT1}, s{sW}, 1            ; hf
s_lshl_b32 s{sT2}, s{sT0}, 12
s_add_u32 s{sQR}, s{sT2}, {QX}
s_lshl_b32 s{sOff}, s{sW}, 10
s_add_u32 s{sQW0}, s{sQR}, s{sOff}
s_xor_b32 s{sQW1}, s{sT2}, 4096
s_add_u32 s{sQW1}, s{sQW1}, {QX}
s_add_u32 s{sQW1}, s{sQW1}, s{sOff}
s_lshl_b32 s{sOff}, s{sT1}, 12
s_add_u32 s{sVXR}, s{sOff}, {VXB}
s_lshl_b32 s{sOff}, s{sT1}, 11
s_add_u32 s{sOW}, s{sT2}, s{sOff}
s_add_u32 s{sOW}, s{sOW}, {OX}
s_lshl_b32 s{sT2}, s{sT0}, 11
s_add_u32 s{sHE}, s{sT2}, {HX}
s_lshl_b32 s{sOff}, s{sW}, 2
s_add_u32 s{sHW0}, s{sHE}, s{sOff}
s_xor_b32 s{sHW1}, s{sHW0}, 2048
s_lshl_b32 s{sOff}, s{sT1}, 2
s_add_u32 s{sHE}, s{sHE}, s{sOff}
s_add_u32 s{sHE}, s{sHE}, 16
s_lshl_b32 s{sOff}, s{sW}, 8
s_add_u32 s{sGW}, s{sOff}, {GX}
s_lshl_b32 s{sOff}, s{sT0}, 8
s_add_u32 s{sGR}, s{sOff}, {GX + 512 + 128}
s_lshl_b32 s{sOff}, s{sT1}, 14
s_add_u32 s{sFE}, s{sOff}, {FE}
s_mov_b32 s{sC}, 0x3e0293ee            ; 128^-0.5 * log2(e)
s_cmp_eq_u32 s{sW}, 0
s_cselect_b32 s{sFlagM}, 1, 0
s_mov_b32 s{sFlagM+1}, 0
''')
    xtile.setup(A, vXD, vXA, sW, 52, 53, sT0)
    A(f"s_and_b32 s{sT0}, s{sW}, 1\ns_lshl_b32 s{sT0}, s{sT0}, 14")
    for k in range(4):
        A(f"v_add_u32 v{vXA+k}, s{sT0}, v{vXA+k}\nv_xor_b32 v{vXB+k}, 16384, v{vXA+k}")
    A(f'''
v_and_b32 v52, 15, v0                 ; n / c / m
v_lshrrev_b32 v53, 4, v0              ; kg
v_bfe_u32 v54, v0, 2, 2               ; r
v_and_b32 v55, 3, v0                  ; p
v_lshrrev_b32 v56, 1, v54
v_lshlrev_b32 v56, 3, v56
v_lshl_add_u32 v56, v53, 1, v56
v_and_b32 v57, 1, v54
v_add_u32 v56, v56, v57               ; 8 (r >> 1) + 2 kg + (r & 1)
v_lshlrev_b32 v56, 10, v56
v_lshl_add_u32 v56, v55, 4, v56
v_lshl_add_u32 v56, v54, 6, v56
s_lshl_b32 s{sT0}, s{sW}, 8
s_add_u32 s{sT0}, s{sT0}, {WD}
v_add_u32 v{vWD}, s{sT0}, v56
s_lshl_b32 s{sT0}, s{sW}, 5
v_add_u32 v56, s{sT0}, v52
v_lshlrev_b32 v56, 5, v56
v_lshl_add_u32 v56, v53, 3, v56
v_add_u32 v{vKMW}, {KMB}, v56
v_lshlrev_b32 v56, 18, v53
v_lshl_add_u32 v56, v52, 4, v56
s_lshl_b32 s{sT0}, s{sH}, 10
s_lshl_b32 s{sT1}, s{sW}, 8
s_add_u32 s{sT0}, s{sT0}, s{sT1}
v_add_u32 v{vRD}, s{sT0}, v56
s_and_b32 s{sT0}, s{sH}, 1
s_lshl_b32 s{sT0}, s{sT0}, 14          ; 16 t rows
s_lshr_b32 s{sT1}, s{sH}, 1
s_lshl_b32 s{sT1}, s{sT1}, 6
s_add_u32 s{sT0}, s{sT0}, s{sT1}
s_lshl_b32 s{sT1}, s{sW}, 4
s_add_u32 s{sT0}, s{sT0}, s{sT1}
v_lshlrev_b32 v56, 10, v52
v_and_b32 v57, 1, v53
v_lshl_add_u32 v56, v57, 3, v56
v_add_u32 v{vOUT}, s{sT0}, v56
''')
    A(f"s_and_b32 s{sT0}, s{sW}, 1\ns_lshl_b32 s{sT0}, s{sT0}, 4\nv_add_u32 v56, s{sT0}, v52\nv_lshlrev_b32 v57, 2, v53")
    for kt in range(2):
        for j in range(4):
            m = sMask + 2*(4*kt + j)
            A(f"v_add_u32 v58, {16*kt + j}, v57\nv_cmp_le_u32 {sp(m)}, v58, v56")
    A(f'''
s_lshl_b32 s{sSeg}, s{sI}, 15
s_lshl_b32 s{sRow}, s{sW}, 13
s_add_u32 s{sSeg}, s{sSeg}, s{sRow}
s_add_u32 s{sM0}, s{sRow}, {XB}
s_lshl_b32 s{sOutS}, s{sI}, 15
s_mul_i32 s{sT0}, s{sI}, {32*8192}
s_lshl_b32 s{sT1}, s{sH}, 13
s_add_u32 s{sT0}, s{sT0}, s{sT1}
s_lshl_b32 s{sT1}, s{sW}, 11
s_add_u32 s{sT0}, s{sT0}, s{sT1}
s_add_u32 s{sT1}, s{sT0}, {WS_KX}
s_add_u32 s{sKX}, s{sWS}, s{sT1}
s_addc_u32 s{sKX+1}, s{sWS+1}, 0
s_add_u32 s{sT1}, s{sT0}, {WS_VX}
s_add_u32 s{sVX}, s{sWS}, s{sT1}
s_addc_u32 s{sVX+1}, s{sWS+1}, 0
s_mul_i32 s{sT0}, s{sI}, {32*4096}
s_lshl_b32 s{sT1}, s{sH}, 12
s_add_u32 s{sT0}, s{sT0}, s{sT1}
s_add_u32 s{sT0}, s{sT0}, {WS_KVM}
s_lshl_b32 s{sT1}, s{sW}, 10
s_add_u32 s{sT1}, s{sT1}, s{sT0}
s_add_u32 s{sKVK}, s{sWS}, s{sT1}
s_addc_u32 s{sKVK+1}, s{sWS+1}, 0
s_lshr_b32 s{sT1}, s{sW}, 1
s_lshl_b32 s{sT1}, s{sT1}, 11
s_add_u32 s{sT1}, s{sT1}, s{sT0}
s_add_u32 s{sKVV}, s{sWS}, s{sT1}
s_addc_u32 s{sKVV+1}, s{sWS+1}, 0
s_lshl_b32 s{sT0}, s{sH}, 15
s_lshl_b32 s{sT1}, s{sW}, 13
s_add_u32 s{sPAw}, s{sT0}, s{sT1}
s_mov_b32 s{sSlot}, 0
s_lshl_b32 s{sCnt}, s{sI}, 8
s_add_u32 s{sCnt}, s{sCnt}, {WS_CNT}
s_mov_b32 s{sArr}, 1
s_mov_b32 s{sStep}, 0
s_waitcnt lgkmcnt(0)
''')
    srd(A, SX, SX, 2048*1024); srd(A, SQ, SQ, 4194304); srd(A, SO, SO, 4194304); srd(A, SD, SD, 1376*1024)
    A(f'''
s_lshl_b32 s{sT0}, s{sH}, 2
s_add_u32 s{sT0}, s{sT0}, s{sCnt}
v_mov_b32 v52, s{sT0}
v_mov_b32 v53, 0
s_lshl_b32 s{sT0}, s{sXCC}, 4
s_add_u32 s{sT0}, s{sT0}, {D_AFI}
v_mov_b32 v54, s{sT0}
v_mov_b32 v55, 1
s_cmp_lg_u32 s{sW}, 0
s_cbranch_scc1 L_af_i0
s_mov_b64 exec, 1
global_store_dword v52, v53, {sp(sWS)}
s_waitcnt vmcnt(0)
global_atomic_add v54, v55, {sp(sDBG)} sc1
s_mov_b64 exec, -1
L_af_i0:
''')


def ffn_weights(A, cfg):
    vA, vFR, vFE, vT = 40, 44, 46, 48
    A(f'''
s_mul_i32 s{sT0}, s{sH}, 43
s_and_b32 s{sT1}, s{sH}, 1
s_sub_u32 s{sT0}, s{sT0}, s{sT1}
s_lshl_b32 s{sT0}, s{sT0}, 1
s_mul_i32 s{sT1}, s{sW}, {128*2752}
s_add_u32 s{sT0}, s{sT0}, s{sT1}
v_lshrrev_b32 v52, 1, v0
v_lshlrev_b32 v52, 2, v52
v_add_u32 v52, s{sT0}, v52
v_and_b32 v53, 1, v0
v_cmp_eq_u32 vcc, 1, v53
v_mov_b32 v54, s{sGate}
v_mov_b32 v55, s{sUp}
v_cndmask_b32 v{vA}, v54, v55, vcc
v_mov_b32 v54, s{sGate+1}
v_mov_b32 v55, s{sUp+1}
v_cndmask_b32 v{vA+1}, v54, v55, vcc
v_mov_b32 v53, 0
v_lshl_add_u64 v[{vA}:{vA+1}], v[52:53], 0, v[{vA}:{vA+1}]
s_mov_b32 s{sB}, 2752
s_mov_b32 s{sB+1}, 0
s_mul_i32 s{sOff}, s{sW}, {128*FROW}
s_mov_b32 s{sT2}, 0
s_mov_b32 exec_lo, -1
s_mov_b32 exec_hi, 0xfff
L_af_fs:
''')
    for i in range(16):
        A(f"s_add_u32 m0, s{sOff}, {i*FROW}\ns_nop 0\nglobal_load_lds_dword v[{vA}:{vA+1}], off")
        A(f"v_lshl_add_u64 v[{vA}:{vA+1}], v[{vA}:{vA+1}], 0, s[{sB}:{sB+1}]")
    A(f'''
s_add_u32 s{sOff}, s{sOff}, {16*FROW}
s_add_u32 s{sT2}, s{sT2}, 1
s_waitcnt vmcnt(32)
s_cmp_lt_u32 s{sT2}, 8
s_cbranch_scc1 L_af_fs
s_mov_b64 exec, -1
v_lshrrev_b32 v52, 4, v0              ; kg
v_bfe_u32 v53, v0, 2, 2               ; r
v_and_b32 v54, 3, v0                  ; p
v_lshl_add_u32 v52, v52, 3, v53
v_mul_u32_u24 v52, {FROW}, v52
v_lshl_add_u32 v52, v54, 3, v52
s_lshl_b32 s{sT0}, s{sW}, 5
v_add_u32 v{vFR}, s{sT0}, v52
v_add_u32 v{vFR+1}, {8*32*FROW}, v{vFR}
s_lshr_b32 s{sT0}, s{sW}, 1
s_lshl_b32 s{sT0}, s{sT0}, 5
s_add_u32 s{sT0}, s{sT0}, 128
s_and_b32 s{sT1}, s{sW}, 1
s_mul_i32 s{sT1}, s{sT1}, {8*32*FROW}
s_add_u32 s{sT0}, s{sT0}, s{sT1}
v_add_u32 v{vFE}, s{sT0}, v52
s_and_b32 s{sT1}, s{sW}, 1
s_lshl_b32 s{sT1}, s{sT1}, 13
s_add_u32 s{sT1}, s{sT1}, s{sFE}
v_add_u32 v{vFE+1}, s{sT1}, v{vL16}
s_waitcnt vmcnt(0)
s_barrier
''')
    for ks in range(16):
        for q in range(2):
            b = FW + 4*ks + 2*q
            A(f"ds_read_b64_tr_b16 v[{b}:{b+1}], v{vFR + (ks >> 3)} offset:{(ks & 7)*32*FROW + q*4*FROW}")
        if ks % 4 == 3: A("s_waitcnt lgkmcnt(0)")
    E = 64
    for ks in range(8):
        for q in range(2):
            b = E + 4*ks + 2*q
            A(f"ds_read_b64_tr_b16 v[{b}:{b+1}], v{vFE} offset:{ks*32*FROW + q*4*FROW}")
        if ks % 4 == 3: A("s_waitcnt lgkmcnt(0)")
    A(f'''
s_cmp_lt_u32 s{sW}, 2
s_cbranch_scc1 L_af_t4
s_mov_b32 exec_lo, 0xff00ff00
s_mov_b32 exec_hi, 0xff00ff00
''')
    for k in range(32): A(f"v_mov_b32 v{E + k}, 0")
    A(f'''
s_mov_b64 exec, -1
v_lshrrev_b32 v52, 4, v0
v_lshlrev_b32 v52, 4, v52
s_and_b32 s{sT0}, s{sW}, 1
s_lshl_b32 s{sT0}, s{sT0}, 9
v_add_u32 v52, s{sT0}, v52
s_mov_b32 exec_lo, 0x01000100
s_mov_b32 exec_hi, 0x01000100
''')
    for ks in range(8): A(f"global_load_dwordx4 {r(E + 4*ks, 4)}, v52, {sp(sGWp)} offset:{64*ks}")
    A("s_mov_b64 exec, -1\ns_waitcnt vmcnt(0)\nL_af_t4:")
    for ks in range(8): A(f"ds_write_b128 v{vFE+1}, {r(E + 4*ks, 4)} offset:{1024*ks}")
    A(f"s_cmp_lg_u32 s{sW}, 0\ns_cbranch_scc1 L_af_w0")
    wait_init(A, 32*cfg.get('nkv', 3) + 32, vTmp, sTO, sDBG, "af", cfg.get('timeout', 1 << 20), "L_af_fail")
    A("L_af_w0:\ns_waitcnt lgkmcnt(0)\ns_barrier")


def proj_weights(A, cfg):
    vD0, vD1, vR0, vR1, vT0, vT1, vDO, vRO = 20, 21, 22, 23, 24, 25, 28, 32
    sBO = sT2
    kv.wsetup(A, sW, sH, vD0, vD1, vR0, vR1, sB, sWo, sT0)
    for i in range(4): A(f"v_xor_b32 v{vDO+i}, {i << 6}, v{vL16}")
    A(f'''
v_lshrrev_b32 v52, 4, v0
v_bfe_u32 v53, v0, 2, 2
v_and_b32 v54, 3, v0
v_lshl_add_u32 v52, v52, 2, v53
v_lshlrev_b32 v52, 10, v52
v_lshl_add_u32 v52, v54, 4, v52
v_lshl_add_u32 v52, v53, 6, v52
s_lshl_b32 s{sT0}, s{sW}, 8
v_add_u32 v{vRO}, s{sT0}, v52
s_lshl_b32 s{sBO}, s{sH}, 17
s_lshl_b32 s{sT0}, s{sW}, 12
s_add_u32 s{sBO}, s{sBO}, s{sT0}
''')
    for P in range(1, 4): A(f"v_xor_b32 v{vRO+P}, {P << 6}, v{vRO}")
    blocks = [kv.wblock(SQ, b, 0, vD0, vD1, vR0, vR1, vT0, vT1, sB, sWo, sOff) for b in range(8)]
    def oblock(ks, q):
        dma = [(SO, vDO + i, f"s_add_u32 s{sOff}, s{sBO}, {(32*ks + 16*q + i)*1024}", f"s_add_u32 m0, s{sWo}, {{slot}} + {i*1024}") for i in range(4)]
        def reads(A, slot):
            for P in range(4):
                A(f"v_add_u32 v{vT0 + (P & 1)}, {slot}, v{vRO + P}")
                for u in range(2):
                    b = 128 + (4*(2*P + u) + ks)*4 + 2*q
                    A(f"ds_read_b64_tr_b16 a[{b}:{b+1}], v{vT0 + (P & 1)} offset:{8*u}")
        return dict(dma=dma, reads=reads, post=[])
    blocks += [oblock(ks, q) for ks in range(4) for q in range(2)]
    loader.ring(A, blocks, [16384*i for i in range(6)], 5, sOff, "af", flags=cfg.get('wflags', ''))


def down_weights(A, cfg):
    A(f'''
s_barrier
s_mul_i32 s{sT0}, s{sH}, 43
s_and_b32 s{sT1}, s{sH}, 1
s_sub_u32 s{sT0}, s{sT0}, s{sT1}
s_mul_i32 s{sT1}, s{sW}, 11
s_add_u32 s{sT0}, s{sT0}, s{sT1}
s_lshl_b32 s{sT0}, s{sT0}, 10
''')
    for i in range(11):
        A(f'''
s_add_u32 s{sT2}, s{sT1}, {i}
s_bfe_u32 s{sB}, s{sT2}, 0x10003
s_lshl_b32 s{sB}, s{sB}, 1
s_and_b32 s{sOff}, s{sT2}, 1
s_add_u32 s{sB}, s{sB}, s{sOff}
s_lshl_b32 s{sB}, s{sB}, 6
v_xor_b32 v{vXT + (i & 1)}, s{sB}, v{vL16}
s_lshl_b32 s{sT2}, s{sT2}, 10
s_add_u32 m0, s{sT2}, {WD}
s_add_u32 s{sOff}, s{sT0}, {i*1024}
buffer_load_dwordx4 v{vXT + (i & 1)}, s[{SD}:{SD+3}], s{sOff} offen lds
''')
    for grp in xtile.dma_lines(SX, vXD, vXT, sSeg, sRow, sOff, sM0):
        for l in grp: A(l)
    A(f'''
v_mov_b32 v20, 0
v_mov_b32 v21, 0
v_mov_b32 v22, 0
v_mov_b32 v23, 0
s_lshl_b32 s{sT0}, s{sW}, 10
s_add_u32 s{sT1}, s{sT0}, {KMB}
v_add_u32 v24, s{sT1}, v{vL16}
ds_write_b128 v24, v[20:23]
s_add_u32 s{sT1}, s{sT0}, {WD + 44*1024}
v_add_u32 v24, s{sT1}, v{vL16}
ds_write_b128 v24, v[20:23]
s_waitcnt vmcnt(0) lgkmcnt(0)
s_barrier
s_and_b32 s{sT0}, s{sH}, 1
s_xor_b32 s{sT0}, s{sT0}, 1
s_mul_i32 s{sT0}, s{sT0}, {43*1024}
s_add_u32 s{sT0}, s{sT0}, {WD}
v_add_u32 v24, s{sT0}, v{vL16}
ds_write_b128 v24, v[20:23]
s_waitcnt lgkmcnt(0)
s_barrier
''')


STACC = [68, 69, 70, 71, 72, 73, 74, 75, 0, 1, 3, 7]
def segment(A, cfg):
    NKV = cfg.get('nkv', 3); NAF = 7 - NKV
    TO = cfg.get('timeout', 1 << 20)
    def stamp(k):
        if cfg.get('stamps'):
            A(f"s_memtime s[4:5]\ns_waitcnt lgkmcnt(0)\ns_sub_u32 s6, s4, s6\ns_add_u32 s{STACC[k]}, s{STACC[k]}, s6\nv_writelane_b32 v159, s6, {k}\ns_mov_b32 s6, s4")
    if cfg.get('stamps'):
        for k in STACC: A(f"s_mov_b32 s{k}, 0")
        A("s_memtime s[6:7]\ns_waitcnt lgkmcnt(0)\ns_mov_b32 s7, 0")
    A("L_af_seg:")
    A(f'''
s_mul_i32 s{sT0}, s{sI}, {-(-65536 // NKV)}
s_lshr_b32 s{sT2}, s{sT0}, 16
s_mul_i32 s{sT0}, s{sT2}, {NKV}
s_sub_u32 s{sT0}, s{sI}, s{sT0}
s_lshl_b32 s{sT0}, s{sT0}, 2
s_lshl_b32 s{sT1}, s{sH}, 7
s_add_u32 s{sT0}, s{sT0}, s{sT1}
s_add_u32 s{sKFl}, s{sT0}, {WS_FKV}
''')
    poll(A, "af_kv", sKFl, sWS, sT2, "gt", TO, "L_af_fail")
    A(f'''
s_lshl_b32 s{sT0}, s{sW}, 11
s_add_u32 m0, s{sT0}, {KXB}
s_nop 0
global_load_lds_dwordx4 v{vL16}, {sp(sKX)} sc1
global_load_lds_dwordx4 v{vL16}, {sp(sKX)} offset:1024 sc1
s_add_u32 m0, s{sT0}, {VXB}
s_nop 0
global_load_lds_dwordx4 v{vL16}, {sp(sVX)} sc1
global_load_lds_dwordx4 v{vL16}, {sp(sVX)} offset:1024 sc1
v_add_u32 v{vTmp}, s{sFE}, v{vL16}
''')
    stamp(0)
    def rd(ks):
        b = XF + 12*(ks & 3)
        return [xtile.read(b, vXA, 0, ks, XB), xtile.read(b + 4, vXB, 0, ks, XB),
                f"ds_read_b128 {r(b + 8, 4)}, v{vTmp} offset:{ks*1024} ;@afx{ks}"]
    for ks in range(3):
        for l in rd(ks): A(l)
    for ks in range(16):
        A(f"@wl afx{ks}")
        b = XF + 12*(ks & 3)
        xs = [r(b, 4), r(b + 4, 4)]
        ms = [mfma(AQ + 0, wq(0, ks), xs[0], ks == 0), mfma(AQ + 4, wq(1, ks), xs[0], ks == 0), mfma(AF_, r(FW + 4*ks, 4), xs[0], ks == 0),
              mfma(AQ + 8, wq(0, ks), xs[1], ks == 0), mfma(AQ + 12, wq(1, ks), xs[1], ks == 0), mfma(AF_ + 4, r(FW + 4*ks, 4), xs[1], ks == 0),
              mfma(AE, r(b + 8, 4), xs[0], ks == 0)]
        nxt = rd(ks + 3) if ks + 3 < 16 else []
        for i, m in enumerate(ms):
            A(m)
            if i in (0, 2, 4) and nxt: A(nxt.pop(0))
    stamp(1)
    PK = 40
    for u in range(2):
        for T in range(2):
            for x in pack(PK + 4*u + 2*T, AQ + 8*u + 4*T): A(x)
        A(f"v_add_u32 v{vXT + u}, s{(sQW0, sQW1)[u]}, v{vL16}\nds_write_b128 v{vXT + u}, {r(PK + 4*u, 4)}")
    A(f"s_mov_b32 s{sT0}, 0xbfb8aa3b")
    gs = [a + b for a in (AF_, AF_ + 4, AE) for b in range(2)]
    for g in gs: A(f"v_mul_f32 v{g}, s{sT0}, v{g}")
    for g in gs: A(f"v_exp_f32 v{g}, v{g}")
    for g in gs: A(f"v_add_f32 v{g}, 1.0, v{g}")
    for g in gs: A(f"v_rcp_f32 v{g}, v{g}")
    A(f"v_lshl_add_u32 v48, v0, 2, s{sGW}\nds_write_b32 v48, v{AE}")
    for g in gs: A(f"v_mul_f32 v{g+2}, v{g}, v{g+2}")
    for k, (a, s) in enumerate(((AF_, sHW0), (AF_ + 4, sHW1), (AE, sHE))):
        A(f"v_cvt_pk_bf16_f32 v{a+2}, v{a+2}, v{a+3}\nv_lshl_add_u32 v{49+k}, v{vL16}, 1, s{s}\nds_write_b32 v{49+k}, v{a+2}")
    A("s_waitcnt vmcnt(0) lgkmcnt(0)\ns_barrier")
    stamp(2)
    A(f"s_add_u32 s{sSeg}, s{sSeg}, {NAF*32768}\ns_add_u32 s{sT0}, s{sI}, {NAF}\ns_cmp_ge_u32 s{sT0}, 64\ns_cbranch_scc1 L_af_nopf")
    for grp in xtile.dma_lines(SX, vXD, vXT, sSeg, sRow, sOff, sM0):
        for l in grp: A(l)
    A("L_af_nopf:")
    A(f"v_lshl_add_u32 v48, v{vL16}, 1, 0\nv_add_u32 v48, {HX}, v48")
    for t in range(2):
        A(f"ds_read_b128 {r(HF32 + 4*t, 4)}, v48 offset:{2048*t}\nds_read_b64 {r(HF16 + 2*t, 2)}, v48 offset:{2048*t + 16}")
    A(f"v_and_b32 v49, 15, v0\nv_lshlrev_b32 v49, 2, v49\nv_add_u32 v50, s{sGR}, v49\nv_add_u32 v49, {GX + 512 + 128}, v49")
    A(f"ds_read_b32 v{OMG}, v49\nds_read_b32 v{OMG+1}, v49 offset:256\nds_read_b32 v{GOWN}, v50 ;@afg")
    def wrd(T):
        b = WF + 8*(T & 1)
        L = [f"v_xor_b32 v{vXT + (T & 1)}, {(T >> 1) << 6}, v{vWD}"]
        for q in range(3):
            L.append(f"ds_read_b64_tr_b16 {r(b + 2*q, 2)}, v{vXT + (T & 1)} offset:{q*16384 + 8*(T & 1)} ;@afw{T}")
        return L
    for l in wrd(0): A(l)
    for T in range(8):
        if T + 1 < 8:
            for l in wrd(T + 1): A(l)
        A(f"@wl afw{T}")
        b = WF + 8*(T & 1)
        for t in range(2): A(mfma(acc(T, t), r(b, 4), r(HF32 + 4*t, 4), True))
        for t in range(2): A(mfma16(acc(T, t), r(b + 4, 2), r(HF16 + 2*t, 2)))
    stamp(3)
    A(f"v_add_u32 v17, s{sQR}, v{vL16}\nv_add_u32 v18, {KXB}, v{vL16}\nv_add_u32 v19, s{sVXR}, v{vL16}")
    for ks in range(4):
        A(f"ds_read_b128 {r(QF + 4*ks, 4)}, v17 offset:{1024*ks}")
        for kt in range(2): A(f"ds_read_b128 {r(KF + 4*(4*kt + ks), 4)}, v18 offset:{1024*(4*kt + ks)} ;@afk{ks}")
    A(f"v_sub_f32 v{OMG}, 1.0, v{OMG}\nv_sub_f32 v{OMG+1}, 1.0, v{OMG+1}")
    for ks in range(4):
        A(f"@wl afk{ks}")
        for kt in range(2): A(mfma((X0, X1)[kt], r(KF + 4*(4*kt + ks), 4), r(QF + 4*ks, 4), ks == 0))
    for k in range(4): A(f"ds_read_b128 {r(VF + 4*k, 4)}, v19 offset:{1024*k}")
    for T in range(8):
        for t in range(2):
            for j in range(4): A(f"v_mul_f32 v{acc(T, t) + j}, v{OMG + t}, v{acc(T, t) + j}")
    A(f"v_mov_b32 v17, 0xff7fffff")
    for kt in range(2):
        for j in range(4):
            x = (X0, X1)[kt] + j
            A(f"v_cndmask_b32 v{x}, v17, v{x}, {sp(sMask + 2*(4*kt + j))}")
    A(f"v_max3_f32 v{KF}, v{X0}, v{X0+1}, v{X0+2}\nv_max3_f32 v{KF+1}, v{X0+3}, v{X1}, v{X1+1}\nv_max3_f32 v{KF}, v{KF}, v{X1+2}, v{X1+3}\nv_max_f32 v{KF}, v{KF}, v{KF+1}")
    XMAX = KF
    stamp(4)
    A(f"s_cmp_lg_u32 s{sW}, 0\ns_cbranch_scc1 L_af_w1")
    A(f"s_lshl_b32 s{sT1}, s{sH}, 7\ns_add_u32 s{sKFl}, s{sT1}, {WS_FCH}")
    poll(A, "af_ch", sKFl, sWS, sI, "gt", TO, "L_af_fail")
    A("L_af_w1:\ns_waitcnt lgkmcnt(0)\ns_barrier")
    stamp(5)
    KD, VM = KF + 4, KF + 8
    A(f'''
global_load_dwordx2 {r(KD, 2)}, v{vL16}, {sp(sKVK)} sc1
global_load_dwordx2 {r(VM + 8, 2)}, v{vL16}, {sp(sKVV)} offset:8 sc1
global_load_dwordx2 {r(VM + 10, 2)}, v{vL16}, {sp(sKVV)} offset:1032 sc1
''')
    ONES = KF + 20
    for k in range(4): A(f"v_mov_b32 v{ONES + k}, 0x3f803f80")
    for k in range(4): A(f"v_mov_b32 v{VM + 2*k + 1}, 0")
    A(f"v_lshlrev_b32 v18, 3, v0\nv_add_u32 v18, {KMB}, v18")
    A(f"s_waitcnt vmcnt(2)\nds_write2_b32 v{vKMW}, v{KD}, v{KD+1} offset0:0 offset1:128\ns_waitcnt lgkmcnt(0)\ns_barrier")
    stamp(6)
    KMF = 128
    for ks in range(4):
        for a in range(2): A(f"ds_read_b64_tr_b16 {r(KMF + 4*ks + 2*a, 2)}, v18 offset:{1024*ks + 512*a} ;@afm{ks}")
    for ks in range(4):
        A(f"@wl afm{ks}")
        A(mfma(MM, r(KMF + 4*ks, 4), r(QF + 4*ks, 4), ks == 0))
    A("s_waitcnt vmcnt(0)")
    for k in range(4): A(f"v_mov_b32 v{VM + 2*k}, v{VM + 8 + k}")
    A(f'''
v_max3_f32 v17, v{XMAX}, v{MM}, v{MM+1}
v_mov_b32 v18, v17
v_permlane32_swap_b32 v17, v18
v_max_f32 v17, v17, v18
v_mov_b32 v18, v17
v_permlane16_swap_b32 v17, v18
v_max_f32 v17, v17, v18
v_mul_f32 v17, s{sC}, v17
''')
    vals = [X0 + j for j in range(4)] + [X1 + j for j in range(4)] + [MM, MM + 1]
    for x in vals: A(f"v_fma_f32 v{x}, v{x}, s{sC}, -v17")
    for x in vals: A(f"v_exp_f32 v{x}, v{x}")
    PX, PM, LL = QF, QF + 4, QF + 8
    for k, x in enumerate((X0, X0 + 2, X1, X1 + 2)): A(f"v_cvt_pk_bf16_f32 v{PX + k}, v{x}, v{x+1}")
    A(f"v_cvt_pk_bf16_f32 v{PM}, v{MM}, v{MM+1}\nv_mov_b32 v{PM+1}, 0")
    OA = [X0, X1, MM, QF + 12]
    A(mfma(LL, r(ONES, 4), r(PX, 4), True))
    for k in range(4): A(mfma(OA[k], r(VF + 4*k, 4), r(PX, 4), True))
    A(mfma16(LL, r(ONES, 2), r(PM, 2)))
    for k in range(4): A(mfma16(OA[k], r(VM + 2*k, 2), r(PM, 2)))
    A(f"v_rcp_f32 v17, v{LL}\nv_mul_f32 v17, v{GOWN}, v17")
    for k in range(4):
        for j in range(4): A(f"v_mul_f32 v{OA[k] + j}, v17, v{OA[k] + j}")
    OP = VF
    for k in range(4):
        for x in pack(OP + 2*k, OA[k]): A(x)
    A(f"v_add_u32 v18, s{sOW}, v{vL16}\nds_write_b128 v18, {r(OP, 4)}\nds_write_b128 v18, {r(OP + 4, 4)} offset:1024")
    A(f"v_add_u32 v19, {OX}, v{vL16}\ns_waitcnt lgkmcnt(0)\ns_barrier")
    stamp(7)
    OF = KF
    for ks in range(4):
        for t in range(2): A(f"ds_read_b128 {r(OF + 4*(2*ks + t), 4)}, v19 offset:{1024*(4*t + ks)} ;@afo{ks}")
    A(f"s_add_u32 s{sOff}, s{sSlot}, s{sPAw}\ns_add_u32 s{sT2}, s{sOff}, 4096")
    PKR = 20
    for P in range(4):
        for ks in range(4):
            if P == 0: A(f"@wl afo{ks}")
            for u in range(2):
                for t in range(2): A(mfma(acc(2*P + u, t), wo(2*P + u, ks), r(OF + 4*(2*ks + t), 4), False))
        if P > 0: store_partial(A, P - 1, PKR)
    store_partial(A, 3, PKR)
    stamp(8)
    SEL, RL, DD = 40, KF, 44
    A(f"v_and_b32 v48, 1, v0\nv_lshlrev_b32 v48, 4, v48\nv_mov_b32 v49, 0x3f80\nv_lshlrev_b32 v48, v48, v49\nv_bfe_u32 v49, v0, 1, 3")
    for k in range(4): A(f"v_cmp_eq_u32 vcc, {k}, v49\nv_cndmask_b32 v{SEL + k}, 0, v48, vcc")
    A("s_waitcnt vmcnt(0)\ns_barrier")
    stamp(11)
    A(f'''
v_mov_b32 v48, s{sCnt}
v_mov_b32 v49, s{sArr}
v_lshl_add_u32 v50, v0, 2, s{sCnt}
s_lshl_b32 s{sT0}, s{sH}, 2
v_add_u32 v48, s{sT0}, v48
s_mov_b64 exec, {sp(sFlagM)}
global_store_dword v48, v49, {sp(sWS)}
s_mov_b32 s{sTO}, 0
s_mov_b32 exec_lo, -1
s_mov_b32 exec_hi, 0
s_branch L_af_ar_e
L_af_ar:
s_sleep 1
L_af_ar_e:
global_load_dword v49, v50, {sp(sWS)} sc1
s_add_u32 s{sTO}, s{sTO}, 1
s_cmp_gt_u32 s{sTO}, {TO}
s_cbranch_scc1 L_af_fail
s_waitcnt vmcnt(0)
v_cmp_gt_u32 vcc, s{sArr}, v49
s_cbranch_vccnz L_af_ar
s_mov_b64 exec, -1
''')
    stamp(9)
    for k in range(8):
        A(f"s_add_u32 s{sOff}, s{sSlot}, {k*32768}\nbuffer_load_dwordx4 {r(RL + 4*k, 4)}, v{vRD}, s[{SPA}:{SPA+3}], s{sOff} offen sc1 ;@afr{k}")
    for k in range(8):
        A(f"@wv afr{k}")
        A(mfma(DD, r(SEL, 4), r(RL + 4*k, 4), k == 0))
    for x in pack(48, DD): A(x)
    stamp(10)
    A(f'''
s_mov_b32 exec_hi, 0
buffer_store_dwordx2 v[48:49], v{vOUT}, s[{SOUT}:{SOUT+3}], s{sOutS} offen
s_mov_b32 exec_hi, -1
''')
    if cfg.get('stamps'):
        A(f'''
s_lshl_b32 s{sT0}, s{sXCC}, 5
s_add_u32 s{sT0}, s{sT0}, s{sH}
s_lshl_b32 s{sT0}, s{sT0}, 2
s_add_u32 s{sT0}, s{sT0}, s{sW}
s_lshl_b32 s{sT0}, s{sT0}, 4
s_add_u32 s{sT0}, s{sT0}, s{sStep}
s_lshl_b32 s{sT0}, s{sT0}, 6
s_add_u32 s{sT0}, s{sT0}, {WS_STAT + 0x300000}
v_lshl_add_u32 v17, v0, 2, s{sT0}
s_mov_b64 exec, 0xffff
global_store_dword v17, v159, {sp(sWS)}
s_mov_b64 exec, -1
''')
    A(f'''
s_add_u32 s{sI}, s{sI}, {NAF}
s_add_u32 s{sOutS}, s{sOutS}, {NAF*32768}
s_add_u32 s{sKX}, s{sKX}, {NAF*32*8192}
s_addc_u32 s{sKX+1}, s{sKX+1}, 0
s_add_u32 s{sVX}, s{sVX}, {NAF*32*8192}
s_addc_u32 s{sVX+1}, s{sVX+1}, 0
s_add_u32 s{sKVK}, s{sKVK}, {NAF*32*4096}
s_addc_u32 s{sKVK+1}, s{sKVK+1}, 0
s_add_u32 s{sKVV}, s{sKVV}, {NAF*32*4096}
s_addc_u32 s{sKVV+1}, s{sKVV+1}, 0
s_xor_b32 s{sSlot}, s{sSlot}, 0x100000
s_add_u32 s{sArr}, s{sArr}, 1
s_add_u32 s{sStep}, s{sStep}, 1
s_cmp_lt_u32 s{sI}, 64
s_cbranch_scc1 L_af_seg
''')


def store_partial(A, P, PKR):
    for t in range(2):
        d = PKR + 4*(2*(P & 1) + t)
        for u in range(2):
            for x in pack(d + 2*u, acc(2*P + u, t)): A(x)
        soff = sOff if P < 2 else sT2
        A(f"buffer_store_dwordx4 {r(d, 4)}, v{vL16}, s[{SPA}:{SPA+3}], s{soff} offen offset:{((2*P + t) & 3)*1024}")


def role(A, cfg):
    NKV = cfg.get('nkv', 3)
    A("L_af:")
    A(f"s_mov_b32 s{sFail}, 0")
    if cfg.get('dev'): A("s_memtime s[96:97]")
    setup(A, cfg)
    ffn_weights(A, cfg)
    proj_weights(A, cfg)
    down_weights(A, cfg)
    A(f"s_sub_u32 s{sT0}, s{sXCC}, {NKV + 1}\ns_lshl_b32 s{sT0}, s{sT0}, 21\ns_add_u32 s{sT0}, s{sT0}, {WS_PA}")
    A(f"s_add_u32 s{sT0}, s{sWS}, s{sT0}\ns_addc_u32 s{sT0+1}, s{sWS+1}, 0")
    srd(A, SPA, sT0, 0x200000)
    srd(A, SOUT, sOutP, 2048*1024)
    A(f"s_lshl_b32 s{sKFl}, s{sXCC}, 4\ns_add_u32 s{sKFl}, s{sKFl}, {D_AFI}\ns_mov_b32 s{sT2}, 32\ns_cmp_lg_u32 s{sW}, 0\ns_cbranch_scc1 L_af_i1")
    poll(A, "af_gi", sKFl, sDBG, sT2, "ge", cfg.get('timeout', 1 << 20), "L_af_fail")
    A("L_af_i1:\ns_barrier")
    if cfg.get('dev'):
        A("s_memtime s[58:59]\ns_waitcnt lgkmcnt(0)\ns_sub_u32 s98, s58, s96")
    segment(A, cfg)
    A("s_branch L_af_fin\nL_af_fail:")
    A(f"s_mov_b64 exec, -1\ns_mov_b32 s{sFail}, 1\nL_af_fin:")
    if cfg.get('dev'):
        import kernel
        A("s_mov_b32 s96, s98\ns_mov_b32 s97, 0\ns_mov_b32 s98, 0\ns_mov_b32 s99, 0")
        if cfg.get('stamps'):
            for i, k in enumerate(STACC): A(f"s_mov_b32 s{84 + i}, s{k}")
        kernel.stats(A)
    A("s_waitcnt vmcnt(0)\ns_endpgm")
```

```python
import re

REG = re.compile(r'^(v|a|s)(\d+)$|^(v|a|s)\[(\d+):(\d+)\]$')

def regs_of(tok):
    tok = tok.strip()
    neg = tok.lstrip('-|').rstrip('|')
    m = REG.match(neg)
    if m:
        if m.group(1): return [(m.group(1), int(m.group(2)))]
        return [(m.group(3), i) for i in range(int(m.group(4)), int(m.group(5)) + 1)]
    if neg == 'vcc': return [('s', 'vcc_lo'), ('s', 'vcc_hi')]
    if neg in ('vcc_lo', 'vcc_hi'): return [('s', neg)]
    if neg == 'exec': return [('s', 'exec_lo'), ('s', 'exec_hi')]
    if neg in ('exec_lo', 'exec_hi'): return [('s', neg)]
    if neg == 'm0': return [('s', 'm0')]
    return []

TRANS = ('v_exp_f32', 'v_log_f32', 'v_rcp_f32', 'v_rsq_f32', 'v_sqrt_f32', 'v_sin_f32', 'v_cos_f32', 'v_rcp_iflag_f32')
VCC = [('s', 'vcc_lo'), ('s', 'vcc_hi')]
EXEC = [('s', 'exec_lo'), ('s', 'exec_hi')]

class Ins:
    __slots__ = ('text', 'op', 'ops', 'mods', 'cls', 'dst', 'src', 'passes', 'srcC', 'srcAB', 'label', 'target', 'wide', 'data', 'lgk', 'n')
    def __init__(self, text):
        self.text = text
        t = text.split(';')[0].strip()
        self.label = None; self.target = None; self.op = ''; self.ops = []; self.mods = ''
        self.cls = 'none'; self.dst = []; self.src = []; self.passes = 0; self.srcC = []; self.srcAB = []
        self.wide = False; self.data = []; self.lgk = 0; self.n = 1
        if not t or t.startswith('.') and not t.endswith(':'): return
        if t.endswith(':'):
            self.label = t[:-1]; self.cls = 'label'; return
        p = t.split(None, 1)
        self.op = op = p[0]
        rest = p[1] if len(p) > 1 else ''
        rest = re.sub(r'(\w+:\[[^\]]*\])', lambda m: m.group(1).replace(',', '|'), rest)
        toks = [x.strip() for x in rest.split(',')] if rest else []
        if toks:
            last = toks[-1].split(None, 1)
            toks[-1] = last[0]
            self.mods = last[1] if len(last) > 1 else ''
        if op in ('s_waitcnt',):
            self.cls = 'wait'; self.mods = rest; return
        self.ops = toks
        R = [regs_of(x) for x in toks]
        flat = lambda L: [r for x in L for r in x]
        if op == 's_nop':
            self.cls = 'nop'; self.n = int(toks[0], 0) + 1; return
        if op in ('s_barrier', 's_endpgm', 's_sleep', 's_setprio', 's_sethalt'):
            self.cls = 'salu'; return
        if op in ('s_branch',) or op.startswith('s_cbranch'):
            self.cls = 'branch'; self.target = toks[0]
            if 'vcc' in op: self.src = list(VCC)
            if 'exec' in op: self.src = list(EXEC)
            return
        if op.startswith('s_load') or op.startswith('s_memtime') or op.startswith('s_memrealtime'):
            self.cls = 'smem'; self.dst = R[0]; self.src = flat(R[1:]); self.lgk = 1 if op == 's_load_dword' else 2; return
        if op.startswith('s_cmp') or op.startswith('s_bitcmp'):
            self.cls = 'salu'; self.src = flat(R); return
        if op.startswith('s_'):
            self.cls = 'salu'; self.dst = R[0] if R else []; self.src = flat(R[1:])
            if 'saveexec' in op: self.dst = self.dst + EXEC; self.src = self.src + EXEC
            if op in ('s_addk_i32', 's_mulk_i32', 's_cmov_b32', 's_cmov_b64'): self.src = self.src + self.dst
            return
        if op.startswith('v_mfma'):
            self.cls = 'mfma'; self.dst = R[0]; self.srcAB = R[1] + R[2]; self.srcC = R[3]; self.src = self.srcAB + self.srcC
            self.passes = 8 if '32x32' in op else 4
            return
        if op.startswith('v_smfmac'):
            self.cls = 'mfma'; self.dst = R[0]; self.srcAB = R[1] + R[2] + R[3]; self.srcC = R[0]; self.src = self.srcAB + self.srcC
            self.passes = 8 if '32x32' in op else 4
            return
        if op.startswith('v_'):
            self.cls = 'valu'
            if op.startswith('v_cmpx'):
                self.dst = list(EXEC); self.src = flat(R)
            elif op.startswith('v_cmp'):
                self.dst = R[0]; self.src = flat(R[1:])
            elif 'permlane' in op and 'swap' in op:
                self.dst = R[0] + R[1]; self.src = R[0] + R[1]
            elif op.startswith(('v_add_co', 'v_sub_co', 'v_subrev_co')):
                self.dst = R[0] + R[1]; self.src = flat(R[2:])
            elif op.startswith(('v_addc_co', 'v_subb_co')):
                self.dst = R[0] + R[1]; self.src = flat(R[2:])
            else:
                self.dst = R[0]; self.src = flat(R[1:])
                if op.startswith(('v_fmac', 'v_mac', 'v_dot2c', 'v_pk_fmac')): self.src += R[0]
                if op.startswith('v_cndmask') and len(toks) == 3: self.src += VCC
                if 'dpp' in op or 'sdwa' in op or 'op_sel' in self.mods: self.src += R[0] if ('dpp' in op and 'bound_ctrl' not in self.mods and False) else []
            return
        if op.startswith('ds_'):
            self.cls = 'ds'; self.lgk = 1
            if op.startswith('ds_read') or op.startswith('ds_bpermute') or op.startswith('ds_permute') or op.startswith('ds_swizzle'):
                self.dst = R[0]; self.src = flat(R[1:])
            elif '_rtn' in op:
                self.dst = R[0]; self.src = flat(R[1:])
            else:
                self.src = flat(R); self.data = flat(R[1:])
            return
        if op.startswith('global_') or op.startswith('buffer_'):
            self.cls = 'vmem'
            if 'load_lds' in op or re.search(r'\blds\b', self.mods):
                self.src = flat(R) + [('s', 'm0')]
            elif 'load' in op:
                self.dst = R[0]; self.src = flat(R[1:])
            elif 'atomic' in op:
                if op.startswith('global_') and len(toks) == 4 or op.startswith('buffer_') and 'sc0' in self.mods:
                    self.dst = R[0]; self.src = flat(R[1:]) + (R[0] if op.startswith('buffer_') else [])
                else: self.src = flat(R)
            elif 'store' in op:
                self.src = flat(R)
                self.data = R[1] if op.startswith('global_') else R[0]
                self.wide = len(self.data) >= 3
            elif op.startswith('buffer_wbl2') or op.startswith('buffer_inv'):
                pass
            else: raise ValueError(text)
            return
        raise ValueError("unknown instruction: " + text)

    @property
    def is_dpp(self): return self.cls == 'valu' and ('_dpp' in self.op or 'quad_perm' in self.mods or 'row_' in self.mods)
    @property
    def is_perm(self): return self.cls == 'valu' and 'permlane' in self.op
    @property
    def is_rfl(self): return self.op.startswith(('v_readfirstlane', 'v_readlane'))
    @property
    def is_trans(self): return self.op.startswith(TRANS)

def inter(a, b):
    if not a or not b: return False
    return not set(a).isdisjoint(b)

def need(p, c):
    w = 0
    vd = [r for r in p.dst if r[0] in 'va']
    sd = [r for r in p.dst if r[0] == 's']
    if p.cls == 'valu':
        if c.cls == 'vmem' and inter(sd, c.src): w = max(w, 5)
        if c.cls == 'valu':
            if c.is_dpp and inter(vd, c.src): w = max(w, 2)
            if c.is_dpp and inter(sd, EXEC): w = max(w, 5)
            if c.is_perm and inter(vd, c.src): w = max(w, 2)
            if c.is_perm and inter(sd, EXEC): w = max(w, 4)
            if c.is_rfl and inter(vd, c.src): w = max(w, 1)
            if c.is_rfl and inter(sd, EXEC): w = max(w, 4)
            if inter([r for r in sd if r not in EXEC], c.src): w = max(w, 2)
            if inter(sd, EXEC) and inter(EXEC, c.src): w = max(w, 2)
            if p.is_trans and not c.is_trans and inter(vd, c.src): w = max(w, 1)
            if ('sdwa' in p.op or 'op_sel' in p.mods) and (inter(vd, c.src) or inter(vd, c.dst)): w = max(w, 1)
        if c.cls == 'mfma':
            if inter(vd, c.src): w = max(w, 2)
            if inter(sd, EXEC): w = max(w, 4)
        if c.cls == 'branch' and ('vccz' in c.op or 'vccnz' in c.op) and inter(sd, VCC): w = max(w, 0)
    if p.cls == 'salu' and inter(p.dst, [('s', 'm0')]) and c.cls == 'vmem' and ('s', 'm0') in c.src: w = max(w, 1)
    if p.cls == 'vmem' and p.wide and p.data:
        if c.cls == 'valu' and inter(p.data, c.dst): w = max(w, 2)
        elif inter(p.data, c.dst): w = max(w, 1)
    if p.cls == 'mfma':
        big = p.passes == 8
        if c.cls == 'mfma':
            if inter(p.dst, c.srcC):
                same = p.dst == c.srcC and p.passes == c.passes
                if not same: w = max(w, 10 if big else 6)
            if inter(p.dst, c.srcAB): w = max(w, 12 if big else 8)
            if inter(p.dst, c.dst) and not inter(p.dst, c.srcC): w = max(w, 10 if big else 6)
        elif c.cls in ('valu', 'vmem', 'ds'):
            if inter(p.dst, c.src) or inter(p.dst, c.dst): w = max(w, 12 if big else 8)
            if c.cls == 'valu' and inter(p.srcC, c.dst): w = max(w, 7 if big else 3)
    return w

class Asm:
    def __init__(self):
        self.lines = []
    def __call__(self, text):
        for l in text.split('\n'):
            if l.strip(): self.lines.append(l.strip())
    def text(self): return '\n'.join(self.lines) + '\n'

def trace(ins, takes=1, force=()):
    lab = {x.label: i for i, x in enumerate(ins) if x.label}
    cnt = {}; out = []; i = 0; guard = 0
    while i < len(ins):
        guard += 1
        if guard > 2000000: raise RuntimeError("trace too long")
        x = ins[i]; out.append(i)
        if x.op == 's_endpgm': break
        if x.cls == 'branch' and x.target in lab:
            t = lab[x.target]
            if x.op == 's_branch':
                c = cnt.get(i, 0); cnt[i] = c + 1
                if t <= i and c >= takes: break
                i = t; continue
            if t <= i or x.target in force:
                c = cnt.get(i, 0)
                if c < takes:
                    cnt[i] = c + 1; i = t; continue
                if t <= i: cnt[i] = 0 if False else c
        i += 1
    return out

def elapsed(seq):
    t = 0; lastm = None
    prev = None
    for x in seq:
        if prev is not None:
            t += prev.n
            if lastm is not None:
                if x.cls == 'mfma': t = max(t, lastm[0] + lastm[1])
                elif x.cls == 'valu': t = max(t, lastm[0] + 2)
        if x.cls == 'mfma': lastm = (t, x.passes)
        prev = x
    return t - 1

def fix_hazards(lines, forces=((),), verbose=False, timed=True):
    lines = list(lines)
    total = 0
    cache = {}
    def parse(l):
        if l not in cache: cache[l] = Ins(l)
        return cache[l]
    for _ in range(5000):
        ins = [parse(l) for l in lines]
        adds = {}
        for force in forces:
            tr = trace(ins, 1, force)
            real = [i for i in tr if ins[i].cls not in ('label', 'none')]
            extra = {}
            hold = -1
            for k, i in enumerate(real):
                c = ins[i]
                if c.cls in ('nop', 'wait', 'branch', 'salu', 'smem'): continue
                if k < hold: continue
                dist = 0; short = 0
                for j in range(k - 1, max(-1, k - 24), -1):
                    p = ins[real[j]]
                    if dist >= 12: break
                    w = need(p, c)
                    if w > dist:
                        d = dist
                        if timed and p.cls == 'mfma':
                            d = max(d, elapsed([ins[real[q]] for q in range(j, k + 1)]))
                        if w > d:
                            pend = sum(extra.get(q, 0) for q in range(j + 1, k + 1))
                            short = max(short, w - d - pend)
                    dist += p.n
                if short > 0:
                    extra[k] = short
                    adds[i] = max(adds.get(i, 0), short)
                    if timed: hold = k + 26
        if not adds: break
        new = []
        for i, l in enumerate(lines):
            if i in adds:
                n = adds[i]
                new.append(f's_nop {n-1}')
                total += n
                if verbose: print('nop', n, 'before', l)
            new.append(l)
        lines = new
    else:
        raise RuntimeError("hazard fixing did not converge")
    return lines, total

def check_waits(lines, forces=((),)):
    ins = [Ins(l) for l in lines]
    errs = []
    for force in forces:
        vm = []; lg = []
        for i in trace(ins, 1, force):
            x = ins[i]
            if x.cls == 'wait':
                m = re.search(r'vmcnt\((\d+)\)', x.mods)
                if m:
                    n = int(m.group(1)); vm = vm[len(vm) - n:] if n < len(vm) else vm
                    if n == 0: vm = []
                m = re.search(r'lgkmcnt\((\d+)\)', x.mods)
                if m:
                    n = int(m.group(1))
                    if n == 0: lg = []
                    elif not any(y.cls == 'smem' for y in lg):
                        lg = lg[len(lg) - n:] if n < len(lg) else lg
                continue
            if x.cls in ('label', 'none', 'nop'): continue
            touched = x.src + x.dst
            for q in (vm, lg):
                for y in q:
                    if inter(y.dst, touched):
                        if (y.cls == x.cls == 'vmem' or y.cls == x.cls == 'ds') and not inter(y.dst, x.src): continue
                        errs.append(f"line {i}: '{x.text}' touches registers of outstanding '{y.text}'")
            if x.cls == 'vmem':
                vm.append(x)
                if len(vm) > 63: errs.append(f"line {i}: more than 63 vm ops outstanding")
            if x.cls in ('ds', 'smem'): lg.append(x)
    return sorted(set(errs))


def resolve_waits(lines):
    out = list(lines)
    for i, l in enumerate(lines):
        if not (l.startswith('@wl') or l.startswith('@wv')): continue
        kind = l[1:3]; tags = l.split()[1:]
        best = None
        for tag in tags:
            n = 0; found = False
            for j in range(i - 1, -1, -1):
                x = lines[j]
                if x.startswith('@'): continue
                y = Ins(x)
                is_op = (y.cls == 'ds') if kind == 'wl' else (y.cls == 'vmem')
                if is_op:
                    m = re.search(r';@(\S+)', x)
                    if m and tag in m.group(1).split(','):
                        found = True; break
                    n += 1
            if not found: raise ValueError(f"tag {tag} not found for wait at line {i}")
            best = n if best is None else min(best, n)
        lim = 15 if kind == 'wl' else 63
        best = min(best, lim)
        out[i] = f"s_waitcnt {'lgkmcnt' if kind == 'wl' else 'vmcnt'}({best})"
    return out

def check_counts(lines, forces=((),)):
    ins = [Ins(l) for l in lines]
    errs = []
    for force in forces:
        n = 0
        for i in trace(ins, 1, force):
            x = ins[i]
            if x.cls == 'wait':
                m = re.search(r'lgkmcnt\((\d+)\)', x.mods)
                if m: n = min(n, int(m.group(1)))
            elif x.cls in ('ds', 'smem'):
                n += x.lgk
                if n > 15: errs.append(f"line {i}: {n} lgkm ops outstanding at '{x.text}'")
    return sorted(set(errs))


def uncovered(lines, forces=((),)):
    ins = [Ins(l) for l in lines]
    seen = set()
    for force in forces: seen.update(trace(ins, 1, force))
    out = []; run = []
    for i, x in enumerate(ins):
        if i not in seen and x.cls in ('valu', 'mfma', 'vmem', 'ds'): run.append(i)
        elif run and (i in seen): out.append(f"lines {run[0]}..{run[-1]} ({ins[run[0]].text})"); run = []
    if run: out.append(f"lines {run[0]}..{run[-1]} ({ins[run[0]].text})")
    return out
```

```python
from asmgen import Asm
from common import *
import loader

STG, QB, KB, OB, KXB, WLB = 0, 8192, 10240, 14336, 16384, 32768

vIDX, vG, vA1, vA2, vA3, vQW, vKW, vQR, vKR, vL16, vKXR, vWL, vOW, vPS, vRP, vPUB, vKVO = range(1, 18)
VXC, VXN, KVP = 20, 28, 36
ASL = 40
ACC = dict(Q0=72, Q1=76, K0=80, K1=84, V0=88, V1=92)
LAND = 96
sH, sW, sStep, sTag, sC, sTO, sFail, sT0, sT1, sM0 = 20, 21, 22, 23, 24, 25, 26, 27, 28, 29
sP0, sP1, sMc, sMn, sKX, sVX, sKVM, sMaskO, sMaskP, sWS = 30, 32, 34, 36, 38, 40, 42, 44, 46, 48
sMin = 50
sDBG = 8
sFlagM, sKn, sKI, sKOff = 12, 14, 17, 18
vFLG = 18


def wq(j, T): b = (2*j + T)*8; return f"a[{b}:{b+7}]"
def wk(j, T): b = 128 + (2*j + T)*8; return f"a[{b}:{b+7}]"
def wv_reg(j, T): b = 128 + (2*(j-4) + T)*8; return f"v[{b}:{b+7}]"
WO_REG_TILES = (3, 4, 5, 6)
WO_LDS_TILES = (0, 1, 2, 7)
def wo_reg(T, kk): b = 192 + (WO_REG_TILES.index(T)*2 + kk)*8; return f"v[{b}:{b+7}]"
def wv_lds_off(j, T): return (2*j + T)*2048
def wo_lds_off(T, kk): return (8 + WO_LDS_TILES.index(T)*2 + kk)*2048

def smf(acc, a, b): return f"v_smfmac_f32_16x16x64_bf16 {r(acc,4)}, {r(a,4)}, {b}, v{vIDX}"
def slot(j): return ASL + 4*j
def rdfrag(dst, off):
    return [f"ds_read_b128 {r(dst,4)}, v{vWL} offset:{off}", f"ds_read_b128 {r(dst+4,4)}, v{vWL} offset:{off+1024}"]

def weave(A, mats, fills):
    for x in fills.get(-1, []): A(x)
    for i, m in enumerate(mats):
        A(m)
        for x in fills.get(i, []): A(x)

def setup_addresses(A):
    A(f'''
v_and_b32 v40, 15, v0                 ; c
v_lshrrev_b32 v41, 4, v0              ; g
v_and_b32 v42, 1, v0
v_cmp_eq_u32 vcc, 1, v42
v_mov_b32 v43, 0x4444
v_mov_b32 v44, 0xeeee
v_cndmask_b32 v{vIDX}, v43, v44, vcc
v_lshlrev_b32 v{vL16}, 4, v0
s_lshl_b32 s{sT0}, s{sW}, 11
v_add_u32 v{vG}, s{sT0}, v{vL16}
''')
    for jj, reg in ((1, vA1), (2, vA2), (3, vA3)):
        A(f"s_xor_b32 s{sT0}, s{sW}, {jj}\ns_lshl_b32 s{sT0}, s{sT0}, 11\nv_add_u32 v{reg}, s{sT0}, v{vL16}")
    A(f'''
s_lshl_b32 s{sT0}, s{sW}, 5
v_add_u32 v43, s{sT0}, v40            ; dim = 32w + c
v_lshlrev_b32 v44, 4, v43
v_lshl_add_u32 v44, v41, 2, v44
v_add_u32 v{vQW}, {QB}, v44
v_lshlrev_b32 v44, 5, v43
v_lshl_add_u32 v44, v41, 3, v44
v_add_u32 v{vKW}, {KB}, v44
v_lshrrev_b32 v44, 2, v0
v_lshlrev_b32 v44, 4, v44
v_lshl_add_u32 v44, v42, 3, v44
v_add_u32 v{vQR}, {QB}, v44
v_lshlrev_b32 v44, 3, v0
v_add_u32 v{vKR}, {KB}, v44
v_add_u32 v{vKXR}, {KXB}, v{vL16}
s_lshl_b32 s{sT0}, s{sW}, 15
s_add_u32 s{sT0}, s{sT0}, {WLB}
v_add_u32 v{vWL}, s{sT0}, v{vL16}
v_and_b32 v44, 7, v0                  ; i
v_lshrrev_b32 v45, 1, v44
v_lshlrev_b32 v45, 2, v45             ; 4*(i>>1)
v_and_b32 v46, 1, v44
v_lshl_add_u32 v45, v46, 1, v45       ; + 2*(i&1)
v_and_b32 v46, 1, v41
v_add_u32 v45, v45, v46               ; + hf
v_lshrrev_b32 v46, 1, v41             ; g>>1
v_lshl_add_u32 v45, v46, 4, v45       ; + 16*(g>>1)
s_and_b32 s{sT0}, s{sW}, 1
s_lshl_b32 s{sT0}, s{sT0}, 5          ; 16*2*(w&1)
s_lshr_b32 s{sT1}, s{sW}, 1
s_lshl_b32 s{sT1}, s{sT1}, 6
s_add_u32 s{sT0}, s{sT0}, s{sT1}
v_add_u32 v45, s{sT0}, v45
v_lshlrev_b32 v45, 4, v45
v_add_u32 v{vOW}, {OB}, v45
v_lshrrev_b32 v44, 2, v40             ; a
v_lshl_add_u32 v44, v44, 2, v41       ; a*4+g
s_lshl_b32 s{sT0}, s{sW}, 5
v_add_u32 v45, s{sT0}, v44            ; R (s = 0)
v_lshlrev_b32 v45, 11, v45
v_lshlrev_b32 v46, 1, v44
v_xor_b32 v46, s{sH}, v46
v_lshl_add_u32 v45, v46, 6, v45
v_and_b32 v46, 3, v40
v_lshl_add_u32 v{vPS}, v46, 4, v45
s_lshl_b32 s{sT0}, s{sH}, 2
s_add_u32 s{sT0}, s{sT0}, s{sW}
s_lshl_b32 s{sT0}, s{sT0}, 11
v_add_u32 v{vRP}, s{sT0}, v{vL16}
v_and_b32 v44, 1, v0
v_lshlrev_b32 v44, 1, v44
v_bfe_u32 v45, v0, 2, 1
v_add_u32 v44, v44, v45
v_lshlrev_b32 v44, 4, v44
v_and_b32 v45, 1, v41
v_lshlrev_b32 v45, 1, v45
v_lshrrev_b32 v46, 1, v41
v_add_u32 v45, v45, v46
v_lshl_add_u32 v44, v45, 2, v44
s_lshl_b32 s{sT0}, s{sH}, 8
s_lshl_b32 s{sT1}, s{sW}, 6
s_add_u32 s{sT0}, s{sT0}, s{sT1}
v_add_u32 v{vPUB}, s{sT0}, v44
s_lshl_b32 s{sT0}, s{sW}, 10
v_add_u32 v{vKVO}, s{sT0}, v{vL16}
s_mov_b32 s{sMaskO}, 0x00ff00ff
s_mov_b32 s{sMaskO+1}, 0x00ff00ff
s_mov_b32 s{sMaskP}, 0x00330033
s_mov_b32 s{sMaskP+1}, 0x00330033
s_mov_b32 s{sC}, 0x3e0293ee            ; 128^-0.5 * log2(e)
s_mov_b32 s{sMin}, 0xfffffffe
s_cmp_eq_u32 s{sW}, 0
s_cselect_b32 s{sFlagM}, 1, 0
s_mov_b32 s{sFlagM+1}, 0
s_lshl_b32 s{sT0}, s{sH}, 7
s_add_u32 s{sT0}, s{sT0}, {WS_FCH}
v_mov_b32 v{vFLG}, s{sT0}
''')

def add64(A, dst, src, imm_or_s):
    A(f"s_add_u32 s{dst}, s{src}, {imm_or_s}\ns_addc_u32 s{dst+1}, s{src+1}, 0")

def setup_bases(A):
    add64(A, sP0, sWS, WS_P)
    add64(A, sP1, sWS, WS_P + 32768)
    add64(A, sMc, sWS, WS_MEM)
    add64(A, sMn, sWS, WS_MEM + 8192)
    A(f"s_lshl_b32 s{sT0}, s{sH}, 13\ns_add_u32 s{sT1}, s{sT0}, {WS_KX}")
    add64(A, sKX, sWS, f"s{sT1}")
    A(f"s_add_u32 s{sT1}, s{sT0}, {WS_VX}")
    add64(A, sVX, sWS, f"s{sT1}")
    A(f"s_lshl_b32 s{sT0}, s{sH}, 12\ns_add_u32 s{sT1}, s{sT0}, {WS_KVM}")
    add64(A, sKVM, sWS, f"s{sT1}")


def prologue(A, cfg):
    SQ, SK, SV, SO, sB, sBO, sOff, sM, sWo = 52, 56, 60, 64, 68, 69, 70, 72, 71
    vD0, vD1, vDO, vR0, vR1, vRO, vT0, vT1, vTO = 104, 105, 106, 110, 111, 112, 120, 121, 40
    PARK = 40
    A(f"""
s_load_dwordx2 s[{SQ}:{SQ+1}], s[0:1], {K_WQ}
s_load_dwordx2 s[{SK}:{SK+1}], s[0:1], {K_WK}
s_load_dwordx2 s[{SV}:{SV+1}], s[0:1], {K_WV}
s_load_dwordx2 s[{SO}:{SO+1}], s[0:1], {K_WO}
s_load_dwordx2 s[{sM}:{sM+1}], s[0:1], {K_MEM0}
v_lshrrev_b32 v52, 4, v0
v_and_b32 v53, 15, v0
v_lshlrev_b32 v54, 2, v52             ; 2 * (2 * row)
v_xor_b32 v54, v54, v53
v_lshlrev_b32 v55, 17, v52            ; row * 16 * 8192
v_lshl_add_u32 v{vD0}, v54, 4, v55
v_xor_b32 v{vD1}, 32, v{vD0}
s_lshr_b32 s{sT0}, s{sW}, 1
s_lshl_b32 s{sT0}, s{sT0}, 3          ; 2 * 4 * (w >> 1)
v_xor_b32 v54, s{sT0}, v0
v_lshlrev_b32 v{vDO}, 4, v54
v_xor_b32 v{vDO+1}, 32, v{vDO}
v_xor_b32 v{vDO+2}, 64, v{vDO}
v_xor_b32 v{vDO+3}, 96, v{vDO}
v_bfe_u32 v53, v0, 2, 2               ; r
v_bfe_u32 v54, v0, 1, 1               ; p >> 1
v_and_b32 v55, 1, v0                  ; p & 1
v_and_b32 v56, 1, v52                 ; gb & 1
v_lshl_add_u32 v57, v53, 1, v56       ; s = 2r + (gb & 1)
v_lshlrev_b32 v57, 1, v57
s_lshl_b32 s{sT0}, s{sW}, 2
v_xor_b32 v57, s{sT0}, v57            ; (4w) ^ 2s
v_add_u32 v57, v57, v54
v_lshlrev_b32 v57, 4, v57
v_lshl_add_u32 v57, v55, 3, v57
v_lshl_add_u32 v57, v53, 8, v57       ; + r * 256
v_lshl_add_u32 v{vR0}, v52, 11, v57   ; + 2 gb * 1024
v_xor_b32 v{vR1}, 32, v{vR0}
v_lshrrev_b32 v57, 1, v52             ; b = gb >> 1
v_lshlrev_b32 v57, 2, v57
v_lshl_add_u32 v57, v56, 3, v57       ; 8a + 4b
v_add_u32 v57, v57, v53               ; + 2c + d = r
v_lshlrev_b32 v57, 10, v57
v_lshl_add_u32 v58, v56, 2, v53       ; s = 4a + r
v_lshlrev_b32 v58, 5, v58
v_lshl_add_u32 v58, v54, 4, v58
v_lshl_add_u32 v58, v55, 3, v58
v_add_u32 v57, v57, v58
s_lshl_b32 s{sT0}, s{sW}, 8
v_add_u32 v{vRO}, s{sT0}, v57
s_lshl_b32 s{sWo}, s{sW}, 12
s_lshl_b32 s{sB}, s{sW}, 15
s_lshl_b32 s{sT0}, s{sH}, 8
s_add_u32 s{sB}, s{sB}, s{sT0}
s_lshl_b32 s{sBO}, s{sH}, 17
s_lshr_b32 s{sT0}, s{sW}, 1
s_lshl_b32 s{sT0}, s{sT0}, 14         ; 16 a rows
s_add_u32 s{sBO}, s{sBO}, s{sT0}
s_and_b32 s{sT0}, s{sW}, 1
s_lshl_b32 s{sT0}, s{sT0}, 13         ; 8 b rows
s_add_u32 s{sBO}, s{sBO}, s{sT0}
""")
    for T in range(1, 8): A(f"v_xor_b32 v{vRO+T}, {32*T}, v{vRO}")
    A(f"""
v_and_b32 v52, 15, v0
v_bfe_u32 v53, v52, 3, 1
s_lshl_b32 s{sT0}, s{sW}, 1
v_add_u32 v53, s{sT0}, v53
v_lshlrev_b32 v53, 10, v53
v_bfe_u32 v54, v52, 2, 1
v_lshl_add_u32 v53, v54, 6, v53
v_and_b32 v54, 3, v52
v_lshl_add_u32 v53, v54, 1, v53       ; + p
s_lshr_b32 s{sT0}, s{sH}, 2
s_lshl_b32 s{sT0}, s{sT0}, 7
s_and_b32 s{sT1}, s{sH}, 3
s_lshl_b32 s{sT1}, s{sT1}, 3
s_add_u32 s{sT0}, s{sT0}, s{sT1}
v_add_u32 v53, s{sT0}, v53
s_lshl_b32 s{sT0}, s{sH}, 8
s_lshl_b32 s{sT1}, s{sW}, 6
s_add_u32 s{sT0}, s{sT0}, s{sT1}
v_lshlrev_b32 v122, 2, v52
v_add_u32 v122, s{sT0}, v122
v_mov_b32 v124, 0
v_mov_b32 v125, 0
v_mov_b32 v126, 0
v_mov_b32 v127, 0
v_mov_b32 v123, -1
s_waitcnt lgkmcnt(0)
""")
    for d in (SQ, SK, SV, SO): srd(A, d, d, 4194304)
    init_flag(A, vFLG, 56, sFlagM, sWS, sDBG)
    A(f"""
global_load_ushort v20, v53, {sp(sM)}
global_load_ushort v21, v53, {sp(sM)} offset:32
global_store_dwordx4 v{vRP}, v[124:127], {sp(sP0)}
global_store_dwordx4 v{vRP}, v[124:127], {sp(sP0)} offset:1024
s_mov_b64 exec, 0xffff
global_store_dword v122, v123, {sp(sMn)}
s_mov_b64 exec, -1
""")
    blocks = []
    def wblock(srd_, kk, dest, name, post=()):
        dma = [(srd_, (vD0, vD1)[(i >> 1) & 1], f"s_add_u32 s{sOff}, s{sB}, {(64*kk + i)*8192}", f"s_add_u32 m0, s{sWo}, {{slot}} + {i*1024}") for i in range(4)]
        def reads(A, slot):
            A(f"v_add_u32 v{vT0}, {slot}, v{vR0}\nv_add_u32 v{vT1}, {slot}, v{vR1}")
            def variant(w):
                j = kk ^ (2*w)
                for T in range(2):
                    kind, base = dest(j, T)
                    for u in range(2):
                        for q in range(2):
                            A(f"ds_read_b64_tr_b16 {kind}[{base + 4*u + 2*q}:{base + 4*u + 2*q + 1}], v{(vT0, vT1)[T]} offset:{(8*u + q)*1024}")
            loader.by_wave(A, sW, f"{name}{kk}", variant)
        blocks.append(dict(dma=dma, reads=reads, post=list(post)))
    def regbase(txt): return int(txt[2:txt.index(':')])
    def oblock(kko, u, q, post=()):
        e0 = 64*kko + 32*u + 2*q
        dma = [(SO, vDO + i, f"s_add_u32 s{sOff}, s{sBO}, {(e0 + 4*(i >> 1) + (i & 1))*1024}", f"s_add_u32 m0, s{sWo}, {{slot}} + {i*1024}") for i in range(4)]
        def reads(A, slot):
            for T in range(8):
                base = PARK + 8*WO_LDS_TILES.index(T) if T in WO_LDS_TILES else regbase(wo_reg(T, kko))
                A(f"v_add_u32 v{vT0 + (T & 1)}, {slot}, v{vRO + T}")
                A(f"ds_read_b64_tr_b16 v[{base + 4*u + 2*q}:{base + 4*u + 2*q + 1}], v{vT0 + (T & 1)}")
        blocks.append(dict(dma=dma, reads=reads, post=list(post)))
    for kk in range(8): wblock(SQ, kk, lambda j, T: ('a', 16*j + 8*T), "lq")
    for kk in range(8): wblock(SK, kk, lambda j, T: ('a', 128 + 16*j + 8*T), "lk")
    for kko in range(2):
        for u in range(2):
            for q in range(2):
                post = []
                if u == 1 and q == 1:
                    for T in WO_LDS_TILES:
                        b = PARK + 8*WO_LDS_TILES.index(T); off = wo_lds_off(T, kko)
                        post += [f"ds_write_b128 v{vWL}, {r(b,4)} offset:{off}", f"ds_write_b128 v{vWL}, {r(b+4,4)} offset:{off+1024}"]
                    post.append("s_waitcnt lgkmcnt(0)")
                oblock(kko, u, q, post)
    for kk in range(8):
        wblock(SV, kk, lambda j, T: ('v', PARK + 16*j + 8*T) if j < 4 else ('v', regbase(wv_reg(j, T))), "lv")
    blocks[0]['post'] += [f"v_lshl_or_b32 v20, v21, 16, v20", f"v_min_u32 v20, s{sMin}, v20", "s_mov_b64 exec, 0xffff",
                          f"global_store_dword v122, v20, {sp(sMc)}", "s_mov_b64 exec, -1"]
    blocks[8]['post'] += ["s_barrier", f"s_mov_b64 exec, {sp(sFlagM)}", f"v_mov_b32 v122, {D_CBAR}", "v_mov_b32 v123, 1",
                          f"global_atomic_add v122, v123, {sp(sDBG)}", "s_mov_b64 exec, -1"]
    loader.ring(A, blocks, [0, 16384, 32768, 65536, 98304, 131072], cfg.get('look', 5), sOff, "c", flags=cfg.get('wflags', ''))
    A("s_barrier")
    for j in range(4):
        for T in range(2):
            b = PARK + 16*j + 8*T; off = wv_lds_off(j, T)
            A(f"ds_write_b128 v{vWL}, {r(b,4)} offset:{off}\nds_write_b128 v{vWL}, {r(b+4,4)} offset:{off+1024}")
        A("s_waitcnt lgkmcnt(4)")
    A(f"v_add_u32 v112, {KB}, v{vKVO}\nds_write_b128 v112, v[124:127]")
    A(f"""
s_mov_b32 s{sTO}, 0
L_cbar:
v_mov_b32 v40, {D_CBAR}
global_load_dword v41, v40, {sp(sDBG)} sc1
s_add_u32 s{sTO}, s{sTO}, 1
s_cmp_gt_u32 s{sTO}, {cfg.get('timeout', 1 << 20)}
s_cbranch_scc1 L_fail
s_waitcnt vmcnt(0)
v_cmp_gt_u32 vcc, 32, v41
s_cbranch_vccnz L_cbar
""")
    for k in range(3): A(f"s_mov_b32 s{sKn + k}, {255 if cfg.get('nokv') else 0}")
    A(f"s_mov_b32 s{sKI}, 0\ns_lshl_b32 s{sKOff}, s{sH}, 7\ns_add_u32 s{sKOff}, s{sKOff}, {WS_FKV}")
    if not cfg.get('noinit'): wait_init(A, 32*cfg.get('nkv', 3) + 32, 40, sTO, sDBG, "c", cfg.get('timeout', 1 << 20), "L_fail")
    kv_check(A, cfg, "first")
    A(f"""
s_lshl_b32 s{sM0}, s{sW}, 11
s_add_u32 s{sM0}, s{sM0}, {KXB}
s_mov_b32 m0, s{sM0}
s_nop 0
global_load_lds_dwordx4 v{vG}, {sp(sKX)} sc1
global_load_lds_dwordx4 v{vG}, {sp(sKX)} offset:1024 sc1
global_load_dwordx4 {r(VXC,4)}, v{vG}, {sp(sVX)} sc1
global_load_dwordx4 {r(VXC+4,4)}, v{vG}, {sp(sVX)} offset:1024 sc1
s_xor_b32 s{sM0}, s{sM0}, 8192
s_add_u32 s{sKX}, s{sKX}, {32*8192}
s_addc_u32 s{sKX+1}, s{sKX+1}, 0
s_add_u32 s{sVX}, s{sVX}, {32*8192}
s_addc_u32 s{sVX+1}, s{sVX+1}, 0
s_waitcnt vmcnt(0) lgkmcnt(0)
s_barrier
""")
    for x in idle_prep(A): A(x)
    A(f"s_waitcnt lgkmcnt(0)\ns_mov_b32 s{sStep}, 0\ns_mov_b32 s{sTag}, 1")

SLOW = []
def kv_check(A, cfg, tag):
    NKV = cfg.get('nkv', 3)
    for l in kv_check_lines(cfg, tag): A(l)

def kv_check_lines(cfg, tag):
    NKV = cfg.get('nkv', 3)
    SLOW.append(f"""
L_kvs_{tag}:
s_nop 7
s_mov_b32 s{sTO}, 0
L_kvp_{tag}:
v_mov_b32 v{vFLG+1}, s{sKOff}
global_load_dword v{vFLG+1}, v{vFLG+1}, {sp(sWS)} sc1
s_add_u32 s{sTO}, s{sTO}, 1
s_cmp_gt_u32 s{sTO}, {cfg.get('timeout', 1 << 20)}
s_cbranch_scc1 L_fail
s_waitcnt vmcnt(0)
v_readfirstlane_b32 s{sKn}, v{vFLG+1}
s_cmp_gt_u32 s{sKn}, s{sKI}
s_cbranch_scc1 L_kvb_{tag}
s_sleep 4
s_branch L_kvp_{tag}
""")
    L = [f"s_cmp_gt_u32 s{sKn}, s{sKI}", f"s_cbranch_scc0 L_kvs_{tag}", f"L_kvb_{tag}:"]
    if NKV == 3:
        L += [f"s_mov_b32 s{sT0}, s{sKn}", f"s_mov_b32 s{sKn}, s{sKn+1}", f"s_mov_b32 s{sKn+1}, s{sKn+2}", f"s_mov_b32 s{sKn+2}, s{sT0}"]
    else:
        L += [f"s_mov_b32 s{sT0}, s{sKn}", f"s_mov_b32 s{sKn}, s{sKn+1}", f"s_mov_b32 s{sKn+1}, s{sT0}"]
    L += [f"s_add_u32 s{sKOff}, s{sKOff}, 4", f"s_and_b32 s{sT0}, s{sKOff}, 127", f"s_cmp_eq_u32 s{sT0}, {4*NKV}",
          f"s_cselect_b32 s{sT0}, {4*NKV}, 0", f"s_sub_u32 s{sKOff}, s{sKOff}, s{sT0}", f"s_cmp_lg_u32 s{sT0}, 0"]
    L += [f"s_addc_u32 s{sKI}, s{sKI}, 0"]
    return L

def slow_paths(A):
    for x in SLOW: A(x)
    SLOW.clear()

def stamp(A, k, cfg):
    if cfg.get('stamps'): A(f"s_memtime s[{60+2*k}:{61+2*k}]")

def idle_prep(A):
    out = []
    for j in (0, 1):
        for T in (0, 1): out += rdfrag(LAND + (2*j + T)*8, wv_lds_off(j, T))
    for x in range(72, 96): out.append(f"v_mov_b32 v{x}, 0")
    return out

def step_body(A, cfg):
    TO = cfg.get('timeout', 1 << 20)
    sfx = ''
    A("L_step:")
    stamp(A, 0, cfg)
    A(f"s_mov_b32 s{sTO}, 0")
    A(f"L_gpoll{sfx}:")
    A(f"global_load_dwordx4 {r(40,4)}, v{vG}, {sp(sMc)} sc1")
    A(f"global_load_dwordx4 {r(44,4)}, v{vG}, {sp(sMc)} offset:1024 sc1")
    A(f"s_add_u32 s{sTO}, s{sTO}, 1\ns_cmp_gt_u32 s{sTO}, {TO}\ns_cbranch_scc1 L_fail")
    A("s_waitcnt vmcnt(0)")
    A("v_max3_u32 v48, v40, v41, v42\nv_max3_u32 v49, v43, v44, v45\nv_max3_u32 v48, v48, v46, v47\nv_max_u32 v48, v48, v49")
    A(f"v_cmp_eq_u32 vcc, -1, v48\ns_cbranch_vccnz L_gpoll{sfx}")
    stamp(A, 1, cfg)
    if cfg.get('stamps'): A(f"s_add_u32 s94, s94, s{sTO}")
    Q0, Q1, K0, K1, V0, V1 = (ACC[k] for k in ("Q0", "Q1", "K0", "K1", "V0", "V1"))
    A(f"ds_write_b128 v{vG}, {r(40,4)}\nds_write_b128 v{vG}, {r(44,4)} offset:1024")
    pre = [f"s_mov_b32 m0, s{sM0}",
           f"global_load_lds_dwordx4 v{vG}, {sp(sKX)} sc1",
           f"global_load_lds_dwordx4 v{vG}, {sp(sKX)} offset:1024 sc1",
           f"global_load_dwordx4 {r(VXN,4)}, v{vG}, {sp(sVX)} sc1",
           f"global_load_dwordx4 {r(VXN+4,4)}, v{vG}, {sp(sVX)} offset:1024 sc1"]
    m = [smf(Q0, slot(0), wq(0, 0)), smf(Q1, slot(0), wq(0, 1)), smf(K0, slot(0), wk(0, 0)), smf(K1, slot(0), wk(0, 1))]
    pf = cfg.get('pf', 1)
    weave(A, m, {0: pre[:2], 1: pre[2:3], 2: pre[3:4], 3: pre[4:5]} if pf == 0 else {})
    A("s_waitcnt lgkmcnt(0)\ns_barrier")
    flag = [f"v_mov_b32 v{vFLG+1}, s{sStep}", f"s_mov_b64 exec, {sp(sFlagM)}",
            f"global_store_dword v{vFLG}, v{vFLG+1}, {sp(sWS)} sc1", "s_mov_b64 exec, -1"]
    areads = []
    for j in range(2, 8):
        areads.append(f"ds_read_b128 {r(slot(j),4)}, v{(vA1, vA2, vA3)[j//2-1]} offset:{(j & 1)*1024} ;@A{j}")
    m = [smf(Q0, slot(1), wq(1, 0)), smf(Q1, slot(1), wq(1, 1)), smf(K0, slot(1), wk(1, 0)), smf(K1, slot(1), wk(1, 1))]
    for j in (0, 1):
        for T in (0, 1): m.append(smf((V0, V1)[T], slot(j), r(LAND + (2*j + T)*8, 8)))
    weave(A, m, {-1: areads, 1: flag[:1], 3: flag[1:]})
    refill = []
    for j in (2, 3):
        for T in (0, 1): refill += rdfrag(LAND + (2*(j-2) + T)*8, wv_lds_off(j, T))
    m = []; f = {}
    for j in range(2, 8):
        f.setdefault(len(m) - 1, []).append(f"@wl A{j}")
        m += [smf(Q0, slot(j), wq(j, 0)), smf(Q1, slot(j), wq(j, 1))]
    for i, x in enumerate(refill): f.setdefault(i, []).append(x)
    weave(A, m, f)
    stamp(A, 2, cfg)
    m = []
    for j in range(2, 8): m += [smf(K0, slot(j), wk(j, 0)), smf(K1, slot(j), wk(j, 1))]
    f = {2: [f"v_add_f32 v{Q0}, v{Q0}, v{Q0+1}"], 3: [f"v_add_f32 v{Q0+2}, v{Q0+2}, v{Q0+3}"],
         4: [f"v_add_f32 v{Q1}, v{Q1}, v{Q1+1}"], 5: [f"v_add_f32 v{Q1+2}, v{Q1+2}, v{Q1+3}"],
         6: [f"v_cvt_pk_bf16_f32 v{Q0}, v{Q0}, v{Q0+2}"], 7: [f"v_cvt_pk_bf16_f32 v{Q1}, v{Q1}, v{Q1+2}"],
         8: [f"ds_write2_b32 v{vQW}, v{Q0}, v{Q1} offset0:0 offset1:64"]}
    weave(A, m, f)
    stamp(A, 3, cfg)
    KXF = {(0, 0): 72, (1, 0): 76, (0, 1): 80, (1, 1): 84, (0, 2): 96, (1, 2): 100, (0, 3): 104, (1, 3): 108}
    def kxread(t, ks): return f"ds_read_b128 {r(KXF[(t, ks)],4)}, v{vKXR} offset:{(t*4 + ks)*1024} ;@kx{t}{ks}"
    m = []
    for j in (2, 3):
        for T in (0, 1): m.append(smf((V0, V1)[T], slot(j), r(LAND + (2*(j-2) + T)*8, 8)))
    for j in range(4, 8):
        for T in (0, 1): m.append(smf((V0, V1)[T], slot(j), wv_reg(j, T)))
    QOP, KMOP = 40, 112
    qreads = [f"ds_read_b64_tr_b16 {r(QOP + 4*ks + 2*a, 2)}, v{vQR} offset:{512*ks + 256*a} ;@q{ks}{a}" for ks in range(4) for a in range(2)]
    kreads = [f"ds_read_b64_tr_b16 {r(KMOP + 4*ks + 2*a, 2)}, v{vKR} offset:{1024*ks + 512*a} ;@km{ks}{a}" for ks in range(4) for a in range(2)]
    f = {-1: ["s_waitcnt lgkmcnt(0)"],
         1: [f"v_add_f32 v{K0}, v{K0}, v{K0+1}", f"v_add_f32 v{K0+2}, v{K0+2}, v{K0+3}"],
         2: [f"v_add_f32 v{K1}, v{K1}, v{K1+1}", f"v_add_f32 v{K1+2}, v{K1+2}, v{K1+3}"],
         3: [f"v_cvt_pk_bf16_f32 v{KVP}, v{K0}, v{K0+2}", f"v_cvt_pk_bf16_f32 v{KVP+1}, v{K1}, v{K1+2}"],
         4: [f"ds_write2_b32 v{vKW}, v{KVP}, v{KVP+1} offset0:0 offset1:128 ;@kw", kxread(0, 0), kxread(1, 0)],
         5: [kxread(0, 1), kxread(1, 1)] + (kv_check_lines(cfg, "step") + pre[:2] if pf == 1 else []),
         6: [kxread(0, 2), kxread(1, 2)] + (pre[2:3] if pf == 1 else []),
         7: [kxread(0, 3), kxread(1, 3)] + (pre[3:5] if pf == 1 else []),
         8: ["@wl kw", "s_barrier"] + qreads[0:2] + kreads[0:2],
         9: ["@wl kx12"] + qreads[2:4] + kreads[2:4],
         10: ["@wl kx13"] + qreads[4:6] + kreads[4:6],
         11: ["@wl km01"] + qreads[6:8] + kreads[6:8]}
    weave(A, m, f)
    stamp(A, 4, cfg)
    X0, X1, MM = 56, 60, 64
    def mf(acc, a, b, first, n=4, op="v_mfma_f32_16x16x32_bf16"):
        return f"{op} {r(acc,4)}, {r(a,n)}, {r(b,n)}, {'0' if first else r(acc,4)}"
    m = []; f = {}
    for ks in range(4):
        f.setdefault(len(m) - 1, []).append(f"@wl km{ks}1")
        m += [mf(X0, KXF[(0, ks)], QOP + 4*ks, ks == 0), mf(X1, KXF[(1, ks)], QOP + 4*ks, ks == 0), mf(MM, KMOP + 4*ks, QOP + 4*ks, ks == 0)]
    VMA, ONES, PX, PM = 68, 48, 40, 44
    vm = [f"v_add_f32 v{V0}, v{V0}, v{V0+1}", f"v_add_f32 v{V0+2}, v{V0+2}, v{V0+3}",
          f"v_add_f32 v{V1}, v{V1}, v{V1+1}", f"v_add_f32 v{V1+2}, v{V1+2}, v{V1+3}",
          f"v_cvt_pk_bf16_f32 v{KVP+2}, v{V0}, v{V0+2}", f"v_cvt_pk_bf16_f32 v{KVP+3}, v{V1}, v{V1+2}",
          f"v_mov_b32 v{VMA}, v{KVP+2}", f"v_mov_b32 v{VMA+1}, 0", f"v_mov_b32 v{VMA+2}, v{KVP+3}", f"v_mov_b32 v{VMA+3}, 0"]
    for i, x in enumerate(vm): f.setdefault(1 + i, []).append(x)
    weave(A, m, f)
    A(f"global_store_dwordx4 v{vKVO}, {r(KVP,4)}, {sp(sKVM)} sc1")
    stamp(A, 5, cfg)
    wl = []
    for T, kk, dst in ((0, 0, 96), (0, 1, 104), (1, 0, 72), (1, 1, 80)): wl += rdfrag(dst, wo_lds_off(T, kk))
    A(f'''
v_max3_f32 v44, v{X0}, v{X0+1}, v{X0+2}
v_max3_f32 v45, v{X0+3}, v{X1}, v{X1+1}
v_max3_f32 v46, v{X1+2}, v{X1+3}, v{MM}
v_max3_f32 v44, v44, v45, v{MM+1}
v_max_f32 v44, v44, v46
{wl[0]}
v_mov_b32 v45, v44
{wl[1]}
{wl[2]}
v_permlane32_swap_b32 v44, v45
v_max_f32 v44, v44, v45
{wl[3]}
v_mov_b32 v45, v44
{wl[4]}
{wl[5]}
v_permlane16_swap_b32 v44, v45
v_max_f32 v44, v44, v45
{wl[6]}
v_mul_f32 v47, s{sC}, v44
{wl[7]}
''')
    vals = [X0, X0+1, X0+2, X0+3, X1, X1+1, X1+2, X1+3, MM, MM+1]
    for x in vals: A(f"v_fma_f32 v{x}, v{x}, s{sC}, -v47")
    for x in vals: A(f"v_exp_f32 v{x}, v{x}")
    for k in range(4): A(f"v_mov_b32 v{ONES+k}, 0x3f803f80") if k < 1 else None
    A(f"v_cvt_pk_bf16_f32 v{PX}, v{X0}, v{X0+1}\nv_cvt_pk_bf16_f32 v{PX+1}, v{X0+2}, v{X0+3}")
    A(f"v_mov_b32 v{ONES+1}, 0x3f803f80")
    A(f"v_cvt_pk_bf16_f32 v{PX+2}, v{X1}, v{X1+1}\nv_cvt_pk_bf16_f32 v{PX+3}, v{X1+2}, v{X1+3}")
    A(f"v_mov_b32 v{ONES+2}, 0x3f803f80\nv_mov_b32 v{ONES+3}, 0x3f803f80")
    A(f"v_cvt_pk_bf16_f32 v{PM}, v{MM}, v{MM+1}\nv_mov_b32 v{PM+1}, 0")
    stamp(A, 6, cfg)
    O0, O1, LL = 112, 116, 120
    o16 = "v_mfma_f32_16x16x16_bf16"
    A(mf(LL, ONES, PX, True)); A(mf(O0, VXC, PX, True)); A(mf(O1, VXC + 4, PX, True))
    A(mf(LL, ONES, PM, False, 2, o16)); A(mf(O0, VMA, PM, False, 2, o16)); A(mf(O1, VMA + 2, PM, False, 2, o16))
    A(f"v_rcp_f32 v124, v{LL}")
    OPK, OA = 88, 88
    for k in range(8): A(f"v_mul_f32 v{O0+k}, v{O0+k}, v124")
    for k in range(4): A(f"v_cvt_pk_bf16_f32 v{OPK+k}, v{O0+2*k}, v{O0+2*k+1}")
    A(f"s_mov_b64 exec, {sp(sMaskO)}\nds_write_b128 v{vOW}, {r(OPK,4)}\ns_mov_b64 exec, -1")
    stamp(A, 7, cfg)
    wl2 = rdfrag(112, wo_lds_off(2, 0)) + rdfrag(120, wo_lds_off(2, 1))
    for x in range(40, 56): A(f"v_mov_b32 v{x}, 0")
    A("s_waitcnt lgkmcnt(0)\ns_barrier")
    A(f"ds_read_b128 {r(OA,4)}, v{vL16} offset:{OB}\nds_read_b128 {r(OA+4,4)}, v{vL16} offset:{OB+1024}")
    for x in wl2: A(x)
    for x in range(56, 72): A(f"v_mov_b32 v{x}, 0")
    A("s_waitcnt lgkmcnt(4)")
    WB = {(0, 0): r(96, 8), (0, 1): r(104, 8), (1, 0): r(72, 8), (1, 1): r(80, 8), (2, 0): r(112, 8), (2, 1): r(120, 8),
          (7, 0): r(96, 8), (7, 1): r(104, 8)}
    for T in WO_REG_TILES:
        for kk in (0, 1): WB[(T, kk)] = wo_reg(T, kk)
    def acc(T): return 40 + 4*T
    m = []; f = {}
    for T in range(8):
        if T == 2: f.setdefault(len(m) - 1, []).append("s_waitcnt lgkmcnt(4)")
        if T == 7: f.setdefault(len(m) - 1, []).append("s_waitcnt lgkmcnt(0)")
        m += [smf(acc(T), OA, WB[(T, 0)]), smf(acc(T), OA + 4, WB[(T, 1)])]
    t7 = rdfrag(96, wo_lds_off(7, 0)) + rdfrag(104, wo_lds_off(7, 1))
    f.setdefault(1, []).extend(t7[0:2]); f.setdefault(2, []).extend(t7[2:4])
    def epi(T):
        a = acc(T); base = 40 if T < 4 else 56
        e = [f"v_add_f32 v{a}, v{a}, v{a+1}", f"v_add_f32 v{a+2}, v{a+2}, v{a+3}", f"v_cvt_pk_bf16_f32 v{base + T % 4}, v{a}, v{a+2}"]
        if T % 4 == 0: e.append(f"v_bfi_b32 v{base}, 1, s{sTag}, v{base}")
        return e
    for T in range(7):
        e = epi(T); p = 2*T + 3
        f.setdefault(p, []).extend(e[:2])
        f.setdefault(min(p + 1, 15), []).extend(e[2:])
    f.setdefault(11, []).append(f"global_store_dwordx4 v{vPS}, {r(40,4)}, {sp(sP0)}")
    weave(A, m, f)
    for x in epi(7): A(x)
    A(f"global_store_dwordx4 v{vPS}, {r(56,4)}, {sp(sP1)}")
    stamp(A, 8, cfg)
    RL, SEL, DD = 48, 60, 64
    A(f"s_mov_b32 s{sTO}, 0")
    A("L_rpoll0:")
    A(f"global_load_dwordx4 {r(RL,4)}, v{vRP}, {sp(sP0)} sc1")
    A(f"global_load_dwordx4 {r(RL+4,4)}, v{vRP}, {sp(sP0)} offset:1024 sc1")
    prep = idle_prep(A)
    for x in prep: A(x)
    A(f"v_and_b32 v68, 1, v0\nv_lshlrev_b32 v68, 4, v68\nv_mov_b32 v69, 0x3f80\nv_lshlrev_b32 v68, v68, v69\nv_bfe_u32 v69, v0, 1, 2")
    for k in range(4): A(f"v_cmp_eq_u32 vcc, {k}, v69\nv_cndmask_b32 v{SEL+k}, 0, v68, vcc")
    for k in range(8): A(f"v_mov_b32 v{VXC+k}, v{VXN+k}") if False else None
    A("s_branch L_rwait")
    A("L_rpoll:")
    A(f"global_load_dwordx4 {r(RL,4)}, v{vRP}, {sp(sP0)} sc1")
    A(f"global_load_dwordx4 {r(RL+4,4)}, v{vRP}, {sp(sP0)} offset:1024 sc1")
    A("L_rwait:")
    A(f"s_add_u32 s{sTO}, s{sTO}, 1\ns_cmp_gt_u32 s{sTO}, {TO}\ns_cbranch_scc1 L_fail")
    A("s_waitcnt vmcnt(0)")
    A(f"v_bitop3_b32 v68, v{RL}, v{RL+4}, s{sTag} bitop3:0x7e\nv_and_b32 v68, 1, v68\nv_cmp_ne_u32 vcc, 0, v68\ns_cbranch_vccnz L_rpoll")
    stamp(A, 9, cfg)
    if cfg.get('stamps'): A(f"s_add_u32 s95, s95, s{sTO}")
    A(mf(DD, RL, SEL, True)); A(mf(DD, RL + 4, SEL, False))
    for k in range(8): A(f"v_mov_b32 v{VXC+k}, v{VXN+k}")
    A(f'''
v_permlane32_swap_b32 v{DD}, v{DD+1}
v_permlane32_swap_b32 v{DD+2}, v{DD+3}
v_add_f32 v{DD}, v{DD}, v{DD+1}
v_add_f32 v{DD+2}, v{DD+2}, v{DD+3}
v_permlane16_swap_b32 v{DD}, v{DD+2}
v_add_f32 v{DD}, v{DD}, v{DD+2}
v_mov_b32_dpp v{DD+1}, v{DD} quad_perm:[2,3,0,1] row_mask:0xf bank_mask:0xf
v_cvt_pk_bf16_f32 v{DD}, v{DD}, v{DD+1}
v_min_u32 v{DD}, s{sMin}, v{DD}
v_mov_b32 v{DD+1}, -1
s_mov_b64 exec, {sp(sMaskP)}
global_store_dword v{vPUB}, v{DD}, {sp(sMn)}
global_store_dword v{vPUB}, v{DD+1}, {sp(sMc)}
s_mov_b64 exec, -1
''')
    if cfg.get('memdump'):
        A(f"s_mov_b64 exec, {sp(sMaskP)}\nglobal_store_dword v{vPUB}, v{DD}, s[56:57]\ns_mov_b64 exec, -1")
        A("s_add_u32 s56, s56, 8192\ns_addc_u32 s57, s57, 0")
    stamp(A, 10, cfg)
    A(f'''
s_mov_b32 s{sT0}, s{sMc}
s_mov_b32 s{sT1}, s{sMc+1}
s_mov_b32 s{sMc}, s{sMn}
s_mov_b32 s{sMc+1}, s{sMn+1}
s_mov_b32 s{sMn}, s{sT0}
s_mov_b32 s{sMn+1}, s{sT1}
s_xor_b32 s{sTag}, s{sTag}, 1
s_xor_b32 s{sM0}, s{sM0}, 8192
v_xor_b32 v{vKXR}, 8192, v{vKXR}
s_add_u32 s{sKX}, s{sKX}, {32*8192}
s_addc_u32 s{sKX+1}, s{sKX+1}, 0
s_add_u32 s{sVX}, s{sVX}, {32*8192}
s_addc_u32 s{sVX+1}, s{sVX+1}, 0
s_add_u32 s{sKVM}, s{sKVM}, {32*4096}
s_addc_u32 s{sKVM+1}, s{sKVM+1}, 0
''')
    if cfg.get('steplog'):
        A(f"""s_memtime s[82:83]
s_lshl_b32 s{sT0}, s{sH}, 2
s_add_u32 s{sT0}, s{sT0}, s{sW}
s_lshl_b32 s{sT0}, s{sT0}, 6
s_add_u32 s{sT0}, s{sT0}, s{sStep}
s_lshl_b32 s{sT0}, s{sT0}, 2
s_add_u32 s{sT0}, s{sT0}, {WS_STAT + 0x200000}
v_mov_b32 v68, s{sT0}
s_waitcnt lgkmcnt(0)
s_sub_u32 s82, s82, s58
v_mov_b32 v69, s82
global_store_dword v68, v69, {sp(sWS)}""")
    if cfg.get('stamps'):
        A("s_waitcnt lgkmcnt(0)")
        for k in range(10):
            A(f"s_sub_u32 s{sT0}, s{62+2*k}, s{60+2*k}\ns_add_u32 s{84+k}, s{84+k}, s{sT0}")
    A(f"s_add_u32 s{sStep}, s{sStep}, 1\ns_cmp_lt_u32 s{sStep}, {cfg.get('nsteps', 63)}\ns_cbranch_scc1 L_step")


def last_step(A, cfg):
    TO = cfg.get('timeout', 1 << 20)
    K0, K1, V0, V1 = (ACC[k] for k in ("K0", "K1", "V0", "V1"))
    A(f"""
s_mov_b32 s{sTO}, 0
L_gpoll_z:
global_load_dwordx4 {r(40,4)}, v{vG}, {sp(sMc)} sc1
global_load_dwordx4 {r(44,4)}, v{vG}, {sp(sMc)} offset:1024 sc1
s_add_u32 s{sTO}, s{sTO}, 1
s_cmp_gt_u32 s{sTO}, {TO}
s_cbranch_scc1 L_fail
s_waitcnt vmcnt(0)
v_max3_u32 v48, v40, v41, v42
v_max3_u32 v49, v43, v44, v45
v_max3_u32 v48, v48, v46, v47
v_max_u32 v48, v48, v49
v_cmp_eq_u32 vcc, -1, v48
s_cbranch_vccnz L_gpoll_z
ds_write_b128 v{vG}, {r(40,4)}
ds_write_b128 v{vG}, {r(44,4)} offset:1024
""")
    A(smf(K0, slot(0), wk(0, 0))); A(smf(K1, slot(0), wk(0, 1)))
    A("s_waitcnt lgkmcnt(0)\ns_barrier")
    for j in range(2, 8):
        A(f"ds_read_b128 {r(slot(j),4)}, v{(vA1, vA2, vA3)[j//2-1]} offset:{(j & 1)*1024} ;@zA{j}")
    A(f"v_mov_b32 v{vFLG+1}, s{sStep}\ns_mov_b64 exec, {sp(sFlagM)}\nglobal_store_dword v{vFLG}, v{vFLG+1}, {sp(sWS)} sc1\ns_mov_b64 exec, -1")
    A(smf(K0, slot(1), wk(1, 0))); A(smf(K1, slot(1), wk(1, 1)))
    for j in (0, 1):
        for T in (0, 1): A(smf((V0, V1)[T], slot(j), r(LAND + (2*j + T)*8, 8)))
    for j in (2, 3):
        for T in (0, 1):
            for x in rdfrag(LAND + (2*(j-2) + T)*8, wv_lds_off(j, T)): A(x + " ;@zR")
    for j in range(2, 8):
        A(f"@wl zA{j}")
        A(smf(K0, slot(j), wk(j, 0))); A(smf(K1, slot(j), wk(j, 1)))
    for j in range(4, 8):
        for T in (0, 1): A(smf((V0, V1)[T], slot(j), wv_reg(j, T)))
    A("s_waitcnt lgkmcnt(0)")
    for j in (2, 3):
        for T in (0, 1): A(smf((V0, V1)[T], slot(j), r(LAND + (2*(j-2) + T)*8, 8)))
    for a_, d in ((K0, KVP), (K1, KVP + 1), (V0, KVP + 2), (V1, KVP + 3)):
        A(f"v_add_f32 v{a_}, v{a_}, v{a_+1}\nv_add_f32 v{a_+2}, v{a_+2}, v{a_+3}\nv_cvt_pk_bf16_f32 v{d}, v{a_}, v{a_+2}")
    A(f"""
global_store_dwordx4 v{vKVO}, {r(KVP,4)}, {sp(sKVM)} sc1
s_add_u32 s{sStep}, s{sStep}, 1
v_mov_b32 v{vFLG+1}, s{sStep}
s_waitcnt vmcnt(0)
s_barrier
s_mov_b64 exec, {sp(sFlagM)}
global_store_dword v{vFLG}, v{vFLG+1}, {sp(sWS)} sc1
s_mov_b64 exec, -1
""")
```

```python
K_X, K_MEM0, K_WQ, K_WK, K_WV, K_WO, K_SEG, K_BX, K_WG, K_WU, K_WD, K_GW, K_OUT, K_DBG, K_WS = range(0, 120, 8)

WS_P    = 0x0000000
WS_MEM  = 0x0040000
WS_CNT  = 0x0080000
WS_FKV  = 0x0090000
WS_FCH  = 0x0092000
WS_KX   = 0x1000000
WS_VX   = 0x2000000
WS_KVM  = 0x3000000
WS_PA   = 0x4000000
WS_STAT = 0x8000000

D_RANK = 0
D_AFI  = 4
D_RANK0 = 128
D_CBAR = 136
D_INIT = 192

def r(base, n): return f"v[{base}:{base+n-1}]"
def sp(b): return f"s[{b}:{b+1}]"
def sq(b): return f"s[{b}:{b+3}]"

def srd(A, dst, ptr, nbytes):
    A(f"s_mov_b32 s{dst}, s{ptr}\ns_and_b32 s{dst+1}, s{ptr+1}, 0xffff\ns_mov_b32 s{dst+2}, {nbytes}\ns_mov_b32 s{dst+3}, 0x00020000")

def init_flag(A, vAddr, vTmp, sMask, sWS, sDBG):
    A(f"""
v_mov_b32 v{vTmp}, 0
s_mov_b64 exec, {sp(sMask)}
global_store_dword v{vAddr}, v{vTmp}, {sp(sWS)} sc1
s_waitcnt vmcnt(0)
v_mov_b32 v{vTmp}, {D_INIT}
v_mov_b32 v{vTmp+1}, 1
global_atomic_add v{vTmp}, v{vTmp+1}, {sp(sDBG)} sc1
s_mov_b64 exec, -1
""")

def wait_init(A, count, vTmp, sTO, sDBG, tag, timeout, fail):
    A(f"""
s_mov_b32 s{sTO}, 0
s_branch L_wi_{tag}_e
L_wi_{tag}:
s_sleep 8
L_wi_{tag}_e:
v_mov_b32 v{vTmp}, {D_INIT}
global_load_dword v{vTmp}, v{vTmp}, {sp(sDBG)} sc1
s_add_u32 s{sTO}, s{sTO}, 1
s_cmp_gt_u32 s{sTO}, {timeout}
s_cbranch_scc1 {fail}
s_waitcnt vmcnt(0)
v_cmp_gt_u32 vcc, {count}, v{vTmp}
s_cbranch_vccnz L_wi_{tag}
""")
```

```python
from asmgen import *
from common import *
import chain as C

KNAME = "gated_mix__memory_aug_recurrent_mem_tr__glu_gated_glu__prompt_kernel"
sRANK, sWAVE, sXCC = 20, 21, 10

def entry(A, cfg):
    A(f'''
s_cmp_ge_u32 s2, 256
s_cbranch_scc1 L_exit
s_load_dwordx2 s[8:9], s[0:1], {K_DBG}
s_load_dwordx2 s[48:49], s[0:1], {K_WS}
s_getreg_b32 s{sXCC}, hwreg(HW_REG_XCC_ID)
s_and_b32 s{sXCC}, s{sXCC}, 7
v_lshrrev_b32 v1, 6, v0
v_and_b32 v0, 63, v0
v_readfirstlane_b32 s{sWAVE}, v1
s_lshl_b32 s11, s{sXCC}, 4
s_cmp_eq_u32 s11, 0
s_cselect_b32 s11, {D_RANK0}, s11
s_waitcnt lgkmcnt(0)
s_cmp_lg_u32 s{sWAVE}, 0
s_cbranch_scc1 L_norank
v_mov_b32 v2, s11
v_mov_b32 v3, 1
s_mov_b64 exec, 1
global_atomic_add v4, v2, v3, s[8:9] sc0
s_waitcnt vmcnt(0)
v_mov_b32 v2, 0
ds_write_b32 v2, v4
s_waitcnt lgkmcnt(0)
s_mov_b64 exec, -1
L_norank:
s_barrier
v_mov_b32 v2, 0
ds_read_b32 v4, v2
s_waitcnt lgkmcnt(0)
v_readfirstlane_b32 s{sRANK}, v4
s_barrier
s_cmp_ge_u32 s{sRANK}, 32
s_cbranch_scc1 L_exit
''')

def stats(A, nregs_from=84):
    A(f'''
s_memtime s[4:5]
s_waitcnt lgkmcnt(0) vmcnt(0)
s_sub_u32 s4, s4, s58
s_lshl_b32 s6, s{sXCC}, 5
s_add_u32 s6, s6, s{sRANK}
s_lshl_b32 s6, s6, 2
s_add_u32 s6, s6, s{sWAVE}
s_lshl_b32 s6, s6, 7
s_add_u32 s6, s6, {WS_STAT}
v_mov_b32 v2, s6
v_mov_b32 v4, s4
v_mov_b32 v5, s{C.sFail}
v_mov_b32 v6, s{C.sStep}
v_mov_b32 v7, s{C.sTO}
global_store_dwordx4 v2, v[4:7], s[48:49]
''')
    for q in range(4):
        for k in range(4): A(f"v_mov_b32 v{4+k}, s{nregs_from + 4*q + k}")
        A(f"global_store_dwordx4 v2, v[4:7], s[48:49] offset:{16 + 16*q}\ns_nop 1")
    A("s_waitcnt vmcnt(0)")

def chain_role(A, cfg):
    A("L_chain:")
    A(f"s_mov_b32 s{C.sFail}, 0")
    if cfg.get('dev'): A("s_memtime s[96:97]")
    C.setup_addresses(A)
    C.setup_bases(A)
    C.prologue(A, cfg)
    if cfg.get('dev'):
        A(f"s_add_u32 s56, s48, {WS_STAT + 0x100000}\ns_addc_u32 s57, s49, 0")
        for k in range(84, 96): A(f"s_mov_b32 s{k}, 0")
        A("s_memtime s[58:59]\ns_waitcnt lgkmcnt(0)\ns_sub_u32 s98, s58, s96")
    C.step_body(A, cfg)
    C.last_step(A, cfg)
    A("s_branch L_cfin\nL_fail:")
    A(f"s_mov_b32 s{C.sFail}, 1\nL_cfin:")
    if cfg.get('dev'):
        A("s_mov_b32 s96, s98\ns_mov_b32 s97, 0\ns_mov_b32 s98, 0\ns_mov_b32 s99, 0")
        stats(A)
    A("s_waitcnt vmcnt(0)\ns_endpgm")
    C.slow_paths(A)

def generate(cfg, header=True):
    A = Asm()
    entry(A, cfg)
    roles = cfg.get('roles', ('chain', 'kv', 'af'))
    nkv = cfg.get('nkv', 3)
    A(f"s_cmp_eq_u32 s{sXCC}, 0\ns_cbranch_scc1 {'L_chain' if 'chain' in roles else 'L_exit'}")
    A(f"s_cmp_le_u32 s{sXCC}, {nkv}\ns_cbranch_scc1 {'L_kv' if 'kv' in roles else 'L_exit'}")
    A(f"s_branch {'L_af' if 'af' in roles else 'L_exit'}")
    A("L_exit:\ns_endpgm")
    if 'chain' in roles: chain_role(A, cfg)
    if 'kv' in roles:
        import kv; kv.role(A, cfg)
    if 'af' in roles:
        import af; af.role(A, cfg)
    lines = resolve_waits(A.lines)
    forces = [()]
    if 'chain' in roles: forces += [('L_chain',), ('L_chain', 'L_fail'), ('L_chain', 'L_kvs_first'), ('L_chain', 'L_kvs_step')]
    if 'kv' in roles: forces += [('L_kv',), ('L_kv', 'L_kv_fin')]
    if 'af' in roles: forces += [('L_af',), ('L_af', 'L_af_t4', 'L_af_nopf', 'L_af_i0', 'L_af_i1', 'L_af_w0', 'L_af_w1'), ('L_af', 'L_af_fail')]
    lines, nn = fix_hazards(lines, forces=forces, verbose=cfg.get('verbose', False))
    for e in uncovered(lines, forces): print("UNCOVERED:", e)
    if not cfg.get('stamps'):
        for e in check_waits(lines, forces) + check_counts(lines, forces): print("CHECK:", e)
    text = "\n".join(lines) + "\n"
    head = ("; @launch grid=(256,1,1) block=(256,1,1) lds=163840\n"
            '.amdgcn_target "amdgcn-amd-amdhsa--gfx950"\n.text\n'
            f".globl {KNAME}\n.p2align 8\n.type {KNAME},@function\n{KNAME}:\n")
    foot = ('.section .rodata,"a"\n.p2align 6\n' f".amdhsa_kernel {KNAME}\n"
            "  .amdhsa_next_free_vgpr 512\n  .amdhsa_next_free_sgpr 102\n  .amdhsa_accum_offset 256\n"
            "  .amdhsa_group_segment_fixed_size 0\n  .amdhsa_kernarg_size 120\n  .amdhsa_user_sgpr_count 2\n"
            "  .amdhsa_user_sgpr_kernarg_segment_ptr 1\n  .amdhsa_system_sgpr_workgroup_id_x 1\n.end_amdhsa_kernel\n")
    return head + text + foot
```

```python
from common import *
import loader, xtile

sH, sW, sXCC = 20, 21, 10
sWS, sDBG = 48, 8
sT0, sT1, sOff, sB, sWo, sSeg, sRow, sM0, sI, sBuf = 27, 28, 29, 30, 31, 32, 33, 34, 35, 36
SX, SK, SV = 52, 56, 60
sKX, sVX, sFlagM, sN = 40, 42, 44, 46
vD0, vD1, vR0, vR1, vT0, vT1, vXD, vXR, vXT, vST, vFL, vFV = 1, 2, 3, 4, 5, 6, 7, 8, 12, 14, 15, 16
XF, ACC, PK = 32, 64, 96
def wk(T, ks): b = (T*16 + ks)*4; return f"a[{b}:{b+3}]"
def wv(T, ks): b = 128 + (T*16 + ks)*4; return f"a[{b}:{b+3}]"

def wsetup(A, sW, sH, vD0, vD1, vR0, vR1, sB, sWo, sT0):
    A(f'''
v_lshrrev_b32 v52, 4, v0
v_and_b32 v53, 15, v0
v_lshlrev_b32 v54, 2, v52
v_xor_b32 v54, v54, v53
v_lshlrev_b32 v55, 13, v52
v_lshl_add_u32 v{vD0}, v54, 4, v55
v_xor_b32 v{vD1}, 32, v{vD0}
v_bfe_u32 v53, v0, 2, 2
v_bfe_u32 v54, v0, 1, 1
v_and_b32 v55, 1, v0
v_and_b32 v56, 1, v52
v_lshl_add_u32 v57, v53, 1, v56
v_lshlrev_b32 v57, 1, v57
s_lshl_b32 s{sT0}, s{sW}, 2
v_xor_b32 v57, s{sT0}, v57
v_add_u32 v57, v57, v54
v_lshlrev_b32 v57, 4, v57
v_lshl_add_u32 v57, v55, 3, v57
v_lshl_add_u32 v57, v53, 8, v57
v_lshl_add_u32 v{vR0}, v52, 11, v57
v_xor_b32 v{vR1}, 32, v{vR0}
s_lshl_b32 s{sWo}, s{sW}, 12
s_lshl_b32 s{sB}, s{sW}, 17
s_lshl_b32 s{sT0}, s{sH}, 8
s_add_u32 s{sB}, s{sB}, s{sT0}
''')

def wblock(srd_, blk, base, vD0, vD1, vR0, vR1, vT0, vT1, sB, sWo, sOff):
    dma = [(srd_, (vD0, vD1)[i >> 1], f"s_add_u32 s{sOff}, s{sB}, {(64*blk + 4*i)*8192}", f"s_add_u32 m0, s{sWo}, {{slot}} + {i*1024}") for i in range(4)]
    def reads(A, slot):
        A(f"v_add_u32 v{vT0}, {slot}, v{vR0}\nv_add_u32 v{vT1}, {slot}, v{vR1}")
        for T in range(2):
            for kl in range(2):
                for q in range(2):
                    b = base + (16*T + 2*blk + kl)*4 + 2*q
                    A(f"ds_read_b64_tr_b16 a[{b}:{b+1}], v{(vT0, vT1)[T]} offset:{kl*8192 + q*1024}")
    return dict(dma=dma, reads=reads, post=[])

def role(A, cfg):
    NKV = cfg.get('nkv', 3)
    A("L_kv:")
    A(f'''
s_load_dwordx2 s[{SX}:{SX+1}], s[0:1], {K_X}
s_load_dwordx2 s[{SK}:{SK+1}], s[0:1], {K_WK}
s_load_dwordx2 s[{SV}:{SV+1}], s[0:1], {K_WV}
''')
    if cfg.get('dev'): A("s_memtime s[96:97]")
    wsetup(A, sW, sH, vD0, vD1, vR0, vR1, sB, sWo, sT0)
    xtile.setup(A, vXD, vXR, sW, 52, 53, sT0)
    A(f'''
s_sub_u32 s{sI}, s{sXCC}, 1
s_lshl_b32 s{sSeg}, s{sI}, 15
s_lshl_b32 s{sRow}, s{sW}, 13
s_add_u32 s{sSeg}, s{sSeg}, s{sRow}
s_mov_b32 s{sM0}, s{sRow}
s_mul_i32 s{sT0}, s{sI}, {32*8192}
s_lshl_b32 s{sT1}, s{sH}, 13
s_add_u32 s{sT0}, s{sT0}, s{sT1}
s_add_u32 s{sT1}, s{sT0}, {WS_KX}
s_add_u32 s{sKX}, s{sWS}, s{sT1}
s_addc_u32 s{sKX+1}, s{sWS+1}, 0
s_add_u32 s{sT1}, s{sT0}, {WS_VX}
s_add_u32 s{sVX}, s{sWS}, s{sT1}
s_addc_u32 s{sVX+1}, s{sWS+1}, 0
v_lshlrev_b32 v{vST}, 4, v0
s_lshl_b32 s{sT0}, s{sW}, 10
v_add_u32 v{vST}, s{sT0}, v{vST}
s_lshl_b32 s{sT0}, s{sI}, 2
s_lshl_b32 s{sT1}, s{sH}, 7
s_add_u32 s{sT0}, s{sT0}, s{sT1}
s_add_u32 s{sT0}, s{sT0}, {WS_FKV}
v_mov_b32 v{vFL}, s{sT0}
s_cmp_eq_u32 s{sW}, 0
s_cselect_b32 s{sFlagM}, 1, 0
s_mov_b32 s{sFlagM+1}, 0
s_mov_b32 s{sN}, 0
s_waitcnt lgkmcnt(0)
''')
    init_flag(A, vFL, 56, sFlagM, sWS, sDBG)
    srd(A, SX, SX, 2048*1024); srd(A, SK, SK, 4194304); srd(A, SV, SV, 4194304)
    for grp in xtile.dma_lines(SX, vXD, vXT, sSeg, sRow, sOff, sM0):
        for l in grp: A(l)
    blocks = [wblock(SK, b, 0, vD0, vD1, vR0, vR1, vT0, vT1, sB, sWo, sOff) for b in range(8)]
    blocks += [wblock(SV, b, 128, vD0, vD1, vR0, vR1, vT0, vT1, sB, sWo, sOff) for b in range(8)]
    loader.ring(A, blocks, [65536 + 16384*i for i in range(6)], 5, sOff, "kv", flags=cfg.get('wflags', ''))
    if cfg.get('dev'):
        A("s_memtime s[58:59]\ns_waitcnt lgkmcnt(0)\ns_sub_u32 s98, s58, s96")
    A(f"s_mov_b32 s{sBuf}, 0")
    for par in range(2):
        A(f"L_kv_seg{par}:")
        A("s_waitcnt vmcnt(0)\ns_barrier")
        A(f'''
v_mov_b32 v{vFV}, s{sN}
s_mov_b64 exec, {sp(sFlagM)}
global_store_dword v{vFL}, v{vFV}, {sp(sWS)} sc1
s_mov_b64 exec, -1
s_add_u32 s{sI}, s{sI}, {NKV}
s_add_u32 s{sSeg}, s{sSeg}, {NKV*32768}
s_add_u32 s{sM0}, s{sRow}, {32768*(1 - par)}
''')
        buf = 32768*par
        def rd(ks): return [xtile.read(XF + 8*(ks & 3) + 4*t, vXR, t, ks, buf) + f" ;@kvx{par}_{ks}" for t in range(2)]
        for ks in range(3):
            for l in rd(ks): A(l)
        dma = xtile.dma_lines(SX, vXD, vXT, sSeg, sRow, sOff, sM0)
        A(f"s_cmp_ge_u32 s{sI}, 64\ns_cbranch_scc1 L_kv_nopf{par}")
        for grp in dma:
            for l in grp: A(l)
        A(f"L_kv_nopf{par}:")
        def acc(i): return ACC + 4*i
        for ks in range(16):
            A(f"@wl kvx{par}_{ks}")
            xs = [r(XF + 8*(ks & 3) + 4*t, 4) for t in range(2)]
            ms = []
            for t in range(2):
                for T in range(2):
                    a = acc(2*t + T); c = "0" if ks == 0 else r(a, 4)
                    ms.append(f"v_mfma_f32_16x16x32_bf16 {r(a,4)}, {wk(T, ks)}, {xs[t]}, {c}")
                for T in range(2):
                    a = acc(4 + 2*T + t); c = "0" if ks == 0 else r(a, 4)
                    ms.append(f"v_mfma_f32_16x16x32_bf16 {r(a,4)}, {xs[t]}, {wv(T, ks)}, {c}")
            nxt = rd(ks + 3) if ks + 3 < 16 else []
            for i, mm in enumerate(ms):
                A(mm)
                if i in (0, 4) and nxt: A(nxt.pop(0))
        for t in range(2):
            for T in range(2):
                a = acc(2*t + T); d = PK + 4*t + 2*T
                A(f"v_cvt_pk_bf16_f32 v{d}, v{a}, v{a+1}\nv_cvt_pk_bf16_f32 v{d+1}, v{a+2}, v{a+3}")
            A(f"global_store_dwordx4 v{vST}, {r(PK + 4*t, 4)}, {sp(sKX)} offset:{0} sc1".replace("offset:0", "") if t == 0 else
              f"v_add_u32 v{vT0}, 4096, v{vST}\nglobal_store_dwordx4 v{vT0}, {r(PK + 4*t, 4)}, {sp(sKX)} sc1")
        A(f"v_lshlrev_b32 v{vT1}, 4, v0\ns_lshl_b32 s{sT0}, s{sW}, 11\nv_add_u32 v{vT1}, s{sT0}, v{vT1}")
        for T in range(2):
            for t in range(2):
                a = acc(4 + 2*T + t); d = PK + 8 + 4*T + 2*t
                A(f"v_cvt_pk_bf16_f32 v{d}, v{a}, v{a+1}\nv_cvt_pk_bf16_f32 v{d+1}, v{a+2}, v{a+3}")
            A(f"global_store_dwordx4 v{vT1}, {r(PK + 8 + 4*T, 4)}, {sp(sVX)} offset:{1024*T} sc1")
        A(f'''
s_add_u32 s{sKX}, s{sKX}, {NKV*32*8192}
s_addc_u32 s{sKX+1}, s{sKX+1}, 0
s_add_u32 s{sVX}, s{sVX}, {NKV*32*8192}
s_addc_u32 s{sVX+1}, s{sVX+1}, 0
s_add_u32 s{sN}, s{sN}, 1
s_cmp_ge_u32 s{sI}, 64
s_cbranch_scc1 L_kv_fin
''')
        if par == 1: A("s_branch L_kv_seg0")
    A(f'''
L_kv_fin:
s_waitcnt vmcnt(0)
s_barrier
v_mov_b32 v{vFV}, s{sN}
s_mov_b64 exec, {sp(sFlagM)}
global_store_dword v{vFL}, v{vFV}, {sp(sWS)} sc1
s_mov_b64 exec, -1
''')
    if cfg.get('dev'):
        import kernel
        A("s_mov_b32 s26, 0\ns_mov_b32 s22, s46\ns_mov_b32 s25, 0\ns_mov_b32 s96, s98\ns_mov_b32 s97, 0\ns_mov_b32 s98, 0\ns_mov_b32 s99, 0")
        for k in range(84, 96): A(f"s_mov_b32 s{k}, 0")
        kernel.stats(A)
    A("s_waitcnt vmcnt(0)\ns_endpgm")
```

```python
def r(kind, base, n): return f"{kind}[{base}:{base+n-1}]"

def selector(A, dst, vK, vKG, t0, t1):
    A(f'''
v_lshrrev_b32 v{t0}, 3, v{vK}
v_cmp_eq_u32 vcc, v{t0}, v{vKG}
v_and_b32 v{t0}, 1, v{vK}
v_lshlrev_b32 v{t0}, 4, v{t0}
v_mov_b32 v{t1}, 0x3f80
v_lshlrev_b32 v{t0}, v{t0}, v{t1}
v_cndmask_b32 v{t0}, 0, v{t0}, vcc
v_bfe_u32 v{t1}, v{vK}, 1, 2
''')
    for i in range(4):
        A(f"v_cmp_eq_u32 vcc, {i}, v{t1}\nv_cndmask_b32 v{dst+i}, 0, v{t0}, vcc")

class Group:
    def __init__(self): self.loads = []; self.jobs = []; self.post = []

def emit(A, groups, window, tmp, flags="", hooks=None):
    hooks = hooks or {}
    issued = 0
    cum = []
    for g in groups:
        issued += len(g.loads); cum.append(issued)
    n = len(groups)
    assert all(cum[min(i + window, n - 1)] - (cum[i - 1] if i else 0) <= 63 for i in range(n))
    for step in range(n + window):
        if step < n:
            for srd, voff, lines, sreg, (kind, base) in groups[step].loads:
                for l in lines: A(l)
                A(f"buffer_load_dwordx4 {r(kind, base, 4)}, v{voff}, s[{srd}:{srd+3}], {sreg} offen {flags}".rstrip())
        p = step - window
        if p < 0: continue
        g = groups[p]
        A(f"s_waitcnt vmcnt({cum[min(step, n - 1)] - cum[p]})")
        for i, (terms, _) in enumerate(g.jobs):
            for k, (kind, base, sel) in enumerate(terms):
                c = "0" if k == 0 else r('v', tmp + 4*i, 4)
                A(f"v_mfma_f32_16x16x32_bf16 {r('v', tmp + 4*i, 4)}, {r(kind, base, 4)}, {r('v', sel, 4)}, {c}")
        if g.post: A("s_waitcnt lgkmcnt(0)")
        for i, (_, (kind, idx)) in enumerate(g.jobs):
            t = tmp + 4*i
            if kind == 'v':
                A(f"v_cvt_pk_bf16_f32 v{idx}, v{t}, v{t+1}\nv_cvt_pk_bf16_f32 v{idx+1}, v{t+2}, v{t+3}")
            else:
                A(f"v_cvt_pk_bf16_f32 v{t}, v{t}, v{t+1}\nv_cvt_pk_bf16_f32 v{t+1}, v{t+2}, v{t+3}")
        for i, (_, (kind, idx)) in enumerate(g.jobs):
            if kind == 'a':
                t = tmp + 4*i
                A(f"v_accvgpr_write_b32 a{idx}, v{t}\nv_accvgpr_write_b32 a{idx+1}, v{t+1}")
        for l in g.post: A(l)
        for l in hooks.get(p, []): A(l)


def ring(A, blocks, slots, look, sOff, tag, flags=""):
    n = len(blocks); R = len(slots)
    assert R >= look + 1
    def issue(b):
        for srd, voff, soff, m0 in blocks[b]['dma']:
            A(m0.format(slot=slots[b % R])); A(soff)
            A(f"buffer_load_dwordx4 v{voff}, s[{srd}:{srd+3}], s{sOff} offen {flags} lds".replace("  ", " "))
    for b in range(min(look, n)): issue(b)
    for b in range(n):
        younger = min(b + look - 1, n - 1) - b
        A(f"s_waitcnt vmcnt({4*younger}) lgkmcnt(0)")
        A("s_barrier")
        if b + look < n: issue(b + look)
        if b > 0:
            for l in blocks[b - 1].get('post', []): A(l)
        blocks[b]['reads'](A, slots[b % R])
    A("s_waitcnt lgkmcnt(0)")
    for l in blocks[n - 1].get('post', []): A(l)

def by_wave(A, sW, tag, emit_variant):
    for w in (1, 2, 3): A(f"s_cmp_eq_u32 s{sW}, {w}\ns_cbranch_scc1 L_{tag}_{w}")
    for w in range(4):
        if w: A(f"L_{tag}_{w}:")
        emit_variant(w)
        if w < 3: A(f"s_branch L_{tag}_e")
    A(f"L_{tag}_e:")
```

```python
from common import *

def setup(A, vXD, vXR, sW, t0, t1, sT):
    A(f'''
s_and_b32 s{sT}, s{sW}, 1
s_lshl_b32 s{sT}, s{sT}, 7
v_lshlrev_b32 v{vXD}, 4, v0
v_xor_b32 v{vXD}, s{sT}, v{vXD}
v_and_b32 v{t0}, 15, v0               ; token
v_lshrrev_b32 v{t1}, 4, v0            ; kg
v_and_b32 v{vXR}, 3, v{t0}
v_xor_b32 v{t1}, v{t1}, v{vXR}
v_lshlrev_b32 v{t1}, 4, v{t1}
v_lshl_add_u32 v{t1}, v{t0}, 10, v{t1}
v_lshrrev_b32 v{t0}, 2, v{t0}
v_lshl_add_u32 v{vXR}, v{t0}, 6, v{t1}
v_xor_b32 v{vXR+1}, 64, v{vXR}
v_xor_b32 v{vXR+2}, 128, v{vXR}
v_xor_b32 v{vXR+3}, 192, v{vXR}
''')

def dma_lines(srd, vXD, vt, sSeg, sRow, sOff, sM0):
    out = []
    for i in range(8):
        t = vt + (i & 1)
        out.append([f"v_xor_b32 v{t}, {i << 4}, v{vXD}", f"s_add_u32 m0, s{sM0}, {i*1024}", f"s_add_u32 s{sOff}, s{sSeg}, {i*1024}",
                    f"buffer_load_dwordx4 v{t}, s[{srd}:{srd+3}], s{sOff} offen lds"])
    return out

def read(dst, vXR, t, ks, buf_off=0):
    return f"ds_read_b128 {r(dst,4)}, v{vXR + (ks & 3)} offset:{buf_off + t*16384 + (ks >> 2)*256}"
```

```python
import sys
import kernel
REF = "gated_mix__memory_aug_recurrent_mem_tr__glu_gated_glu__prompt.s.ref"
OUT = "gated_mix__memory_aug_recurrent_mem_tr__glu_gated_glu__prompt.s"
def build(out=OUT, **cfg):
    cfg.setdefault('dev', False)
    txt = kernel.generate(cfg)
    head = []
    for l in open(REF):
        if l.startswith('; @launch'): break
        head.append(l)
    open(out, 'w').write(''.join(head) + txt)
    print(out, len(''.join(head) + txt), "bytes")
if __name__ == '__main__':
    args = [a for a in sys.argv[1:] if '=' not in a]
    cfg = {}
    for a in sys.argv[1:]:
        if '=' in a:
            k, v = a.split('=', 1)
            try: v = int(v, 0)
            except ValueError: pass
            cfg[k] = v
    build(args[0] if args else OUT, **cfg)
```
